```python
import torch

def _softmax(x, axis=-1):
    return torch.softmax(x, dim=axis)
def _gelu(x):
    return torch.nn.functional.gelu(x, approximate="tanh")
def _silu(x):
    return torch.nn.functional.silu(x)
def _sigmoid(x):
    return torch.sigmoid(x)
def _layernorm(x, axis=-1, eps=1e-5):
    m = x.mean(dim=axis, keepdim=True)
    v = x.var(dim=axis, keepdim=True, unbiased=False)
    return (x - m) / torch.sqrt(v + eps)
def _scatter_add(tgt, idx, src, axis=0):
    return tgt.clone().index_add_(axis, idx, src)
def _segment_sum(src, seg, n):
    out = torch.zeros((n,) + src.shape[1:], dtype=src.dtype)
    return out.index_add_(0, seg, src)
def _pad(x, pw):
    flat = tuple(v for pair in reversed(pw) for v in pair)
    return torch.nn.functional.pad(x, flat)

kernel_name = 'standalone__gqa_block_cached__near_ridge'

def setup_inputs():

    _w = (lambda a: (lambda t: t.to(torch.bfloat16) if t.is_floating_point() else t)(torch.as_tensor(a)))
    B, Sq, D = 8, 96, 512
    Hq, Hkv, Sk, Dh = 32, 32, 1024, 128
    assert Hq % Hkv == 0, (Hq, Hkv)
    return {
        "x": _w((lambda *s: torch.randn(*s, dtype=torch.bfloat16) * 0.8)(B, Sq, D)),
        "k_cache": _w((lambda *s: torch.randn(*s, dtype=torch.bfloat16) * 0.8)(B, Hkv, Sk, Dh)),
        "v_cache": _w((lambda *s: torch.randn(*s, dtype=torch.bfloat16) * 0.05)(B, Hkv, Sk, Dh)),
        "wq": _w((lambda *s: torch.randn(*s, dtype=torch.bfloat16) * 0.8)(D, Hq * Dh) * (D ** -0.5)),
        "wo": _w((lambda *s: torch.randn(*s, dtype=torch.bfloat16) * 0.05)(Hq * Dh, D) * ((Hq * Dh) ** -0.5)),
    }

def reference(x, k_cache, v_cache, wq, wo):
    B, Sq, D = x.shape
    Hq, Dh = 32, 128
    Hkv = k_cache.shape[1]
    rep = Hq // Hkv
    q = (lambda x, *d: x.permute(*d))((x @ wq).reshape(B, Sq, Hq, Dh), 0, 2, 1, 3)
    k = (lambda x, n, axis: torch.repeat_interleave(x, n, dim=axis))(k_cache, rep, axis=1)
    v = (lambda x, n, axis: torch.repeat_interleave(x, n, dim=axis))(v_cache, rep, axis=1)
    scores = torch.einsum("bhqd,bhkd->bhqk", q, k) * (Dh ** -0.5)
    p = _softmax(scores, axis=-1)
    o = torch.einsum("bhqk,bhkd->bhqd", p, v)
    return (lambda x, *d: x.permute(*d))(o, 0, 2, 1, 3).reshape(B, Sq, Hq * Dh) @ wo
```

```python
import sys, struct

def f32bits(x):
    return struct.unpack("<I", struct.pack("<f", x))[0]

class Asm:
    def __init__(self):
        self.o = []
    def __call__(self, s):
        for line in s.split("\n"):
            self.o.append("    " + line.strip() if not line.strip().endswith(":") else line.strip())
    def raw(self, s):
        self.o.append(s)
    def text(self):
        return "\n".join(self.o) + "\n"

def vr(base, n):
    return f"v[{base}:{base+n-1}]" if n > 1 else f"v{base}"

WS_O = 0
WS_WO = 8 << 20
WS_STAMP = 16 << 20

LK = 0
LV = 65536
LX = 131072
WQ_BUF = [24 * 1024, 112 * 1024]
X_BUF = [[88 * 1024, 96 * 1024, 104 * 1024],
         [56 * 1024, 144 * 1024, 152 * 1024]]
LDS_BYTES = 160 * 1024

SCALE_LOG2E = (128 ** -0.5) * 1.4426950408889634
THRESH = 1024.0

NT = " nt"

def srd(A, d, lo, hi, nbytes):
    A(f"s_mov_b32 s{d}, s{lo}")
    A(f"s_and_b32 s{d+1}, s{hi}, 0xffff")
    A(f"s_mov_b32 s{d+2}, {hex(nbytes)}")
    A(f"s_mov_b32 s{d+3}, 0x20000")

class VmTrack:
    def __init__(self, A):
        self.A = A; self.ops = []; self.done = -1
    def issue(self, tag):
        self.ops.append(tag)
    def wait(self, tag):
        idx = max(i for i, t in enumerate(self.ops) if t == tag)
        if idx <= self.done: return
        n = len(self.ops) - 1 - idx
        n = min(n, 63)
        self.done = len(self.ops) - 1 - n
        self.A(f"s_waitcnt vmcnt({n})")

def gen_k1(A, stamp=False):
    sX, sK, sV, sWQ, sWO, sWS = 20, 24, 28, 32, 36, 40
    sWAVE, sB, sH = 44, 45, 46
    sKVOFF = 47
    sT0, sT1, sT2, sT3 = 48, 49, 50, 51
    sC, sTHR = 52, 53
    sXG = 54
    sWQG = 55
    sXL0, sXL1 = 56, 57
    sLOOP = 58
    A.raw(".p2align 8\nattn_kernel:")
    A("s_cmp_ge_u32 s2, 256\ns_cbranch_scc1 K1_END")
    if stamp: A("s_memrealtime s[60:61]")
    A("s_load_dwordx16 s[4:19], s[0:1], 0")
    A("v_lshrrev_b32 v1, 6, v0\nv_and_b32 v0, 63, v0\ns_nop 0")
    A(f"v_readfirstlane_b32 s{sWAVE}, v1")
    A(f"s_and_b32 s{sT0}, s2, 7\ns_lshr_b32 s{sT1}, s2, 3\ns_and_b32 s{sT2}, s{sT1}, 3")
    A(f"s_lshl_b32 s{sH}, s{sT0}, 2\ns_add_u32 s{sH}, s{sH}, s{sT2}\ns_lshr_b32 s{sB}, s{sT1}, 2")
    A(f"s_lshl_b32 s{sKVOFF}, s{sB}, 5\ns_add_u32 s{sKVOFF}, s{sKVOFF}, s{sH}\ns_lshl_b32 s{sKVOFF}, s{sKVOFF}, 18")
    A(f"s_mov_b32 s{sC}, {hex(f32bits(SCALE_LOG2E))}\ns_mov_b32 s{sTHR}, {hex(f32bits(THRESH))}")
    A("v_lshrrev_b32 v1, 4, v0\nv_and_b32 v2, 15, v0")
    vDKc = 4
    A("v_xor_b32 v3, v2, v1")
    for n in range(4):
        A(f"v_xor_b32 v{vDKc+n}, {4*n}, v3\nv_lshlrev_b32 v{vDKc+n}, 4, v{vDKc+n}")
    vDK = 8
    vDX = 12
    for n in range(4):
        A(f"v_lshl_add_u32 v{vDK+n}, v1, 8, v{vDKc+n}")
        A(f"v_lshl_add_u32 v{vDX+n}, v1, 10, v{vDKc+n}")
    vDV, vDW = 16, 17
    A("v_lshlrev_b32 v3, 2, v1\nv_xor_b32 v3, v3, v2\nv_lshlrev_b32 v3, 4, v3")
    A(f"v_lshl_add_u32 v{vDV}, v1, 8, v3")
    A(f"v_lshl_add_u32 v{vDW}, v1, 13, v3")
    A("s_waitcnt lgkmcnt(0)")
    srd(A, sX, 4, 5, 8*96*512*2)
    srd(A, sK, 6, 7, 64 << 20)
    srd(A, sV, 8, 9, 64 << 20)
    srd(A, sWQ, 10, 11, 4 << 20)
    srd(A, sWO, 12, 13, 4 << 20)
    srd(A, sWS, 18, 19, 256 << 20)
    A(f"s_mul_i32 s{sXG}, s{sB}, 96\ns_lshl_b32 s{sT0}, s{sWAVE}, 5\ns_add_u32 s{sXG}, s{sXG}, s{sT0}\ns_lshl_b32 s{sXG}, s{sXG}, 10")
    A(f"s_lshl_b32 s{sWQG}, s{sH}, 8")
    A(f"s_mov_b32 s{sXL0}, {X_BUF[0][0]}\ns_mov_b32 s{sXL1}, {X_BUF[1][0]}")
    A(f"s_cmp_eq_u32 s{sWAVE}, 1\ns_cselect_b32 s{sXL0}, {X_BUF[0][1]}, s{sXL0}\ns_cselect_b32 s{sXL1}, {X_BUF[1][1]}, s{sXL1}")
    A(f"s_cmp_eq_u32 s{sWAVE}, 2\ns_cselect_b32 s{sXL0}, {X_BUF[0][2]}, s{sXL0}\ns_cselect_b32 s{sXL1}, {X_BUF[1][2]}, s{sXL1}")

    def dma_wq(buf, chunk):
        A(f"s_lshl_b32 s{sT0}, s{sWAVE}, 13\ns_add_u32 s{sT0}, s{sT0}, {WQ_BUF[buf]}")
        A(f"s_lshl_b32 s{sT1}, s{sWAVE}, 18\ns_add_u32 s{sT1}, s{sT1}, s{sWQG}\ns_add_u32 s{sT1}, s{sT1}, {chunk*128*8192}")
        for n in range(8):
            A(f"s_mov_b32 m0, s{sT0}\ns_add_u32 s{sT0}, s{sT0}, 1024")
            A(f"buffer_load_dwordx4 v{vDW}, s[{sWQ}:{sWQ+3}], s{sT1} offen lds")
            A(f"s_add_u32 s{sT1}, s{sT1}, {4*8192}")
    def dma_x(buf, chunk):
        sXL = sXL0 if buf == 0 else sXL1
        A(f"s_mov_b32 s{sT0}, s{sXL}\ns_add_u32 s{sT1}, s{sXG}, {chunk*256}")
        for n in range(8):
            A(f"s_mov_b32 m0, s{sT0}\ns_add_u32 s{sT0}, s{sT0}, 1024")
            A(f"buffer_load_dwordx4 v{vDX+n%4}, s[{sX}:{sX+3}], s{sT1} offen lds")
            A(f"s_add_u32 s{sT1}, s{sT1}, 4096")

    A(f"s_cmp_eq_u32 s{sWAVE}, 3\ns_cbranch_scc1 K1_LOADER")

    vKA = 20
    vVA = 28
    vWA = 32
    vXA = 36
    vWB = 44
    vNMC, vL, vTS, vTMP, vTMP2, vAL = 48, 49, 50, 51, 52, 53
    vST = 54
    vQ = 64
    vO = 96
    vS = 160
    vP = 176
    vPK = 192
    vKF = 200
    vVF = 232

    dma_x(0, 0); dma_wq(0, 0)
    dma_x(1, 1); dma_wq(1, 1)
    A("v_and_b32 v3, 31, v0\nv_lshrrev_b32 v18, 5, v0")
    A("v_and_b32 v19, 15, v3\nv_xor_b32 v19, v19, v18\nv_lshlrev_b32 v19, 4, v19")
    A(f"v_lshl_add_u32 v{vKA}, v3, 8, v19")
    for s in range(1, 8):
        A(f"v_xor_b32 v{vKA+s}, {32*s}, v{vKA}")
    A("v_lshrrev_b32 v19, 2, v2")
    A("v_and_b32 v56, 1, v1\nv_lshlrev_b32 v56, 5, v56")
    A("v_and_b32 v57, 3, v2\nv_lshlrev_b32 v57, 3, v57")
    A("v_add_u32 v56, v56, v57")
    for T in range(4):
        A(f"v_xor_b32 v57, {T}, v19\nv_lshl_add_u32 v57, v57, 6, v56")
        A(f"v_lshl_add_u32 v58, v18, 2, v19\nv_lshl_add_u32 v{vVA+T}, v58, 8, v57")
        A(f"v_add_u32 v{vVA+T}, {LV}, v{vVA+T}")
        A(f"v_lshl_add_u32 v58, v18, 3, v19\nv_lshl_add_u32 v{vWA+T}, v58, 8, v57")
    A("v_lshrrev_b32 v57, 4, v3\nv_lshlrev_b32 v57, 17, v57\nv_and_b32 v58, 15, v3\nv_lshl_add_u32 v57, v58, 4, v57")
    A(f"v_lshl_add_u32 v{vST}, v18, 8, v57")
    for r in range(64):
        A(f"v_mov_b32 v{vO+r}, 0")

    def qproj_chunk(buf):
        sXL = sXL0 if buf == 0 else sXL1
        for s in range(8):
            A(f"v_add_u32 v{vXA+s}, s{sXL}, v{vKA+s}")
        for T in range(4):
            A(f"v_add_u32 v{vWB+T}, {WQ_BUF[buf]}, v{vWA+T}")
        for s in range(8):
            A(f"ds_read_b128 {vr(vKF+4*s,4)}, v{vXA+s}")
        def rd(s):
            base = vS + 16 * (s % 2)
            for T in range(4):
                for t in range(2):
                    A(f"ds_read_b64_tr_b16 {vr(base+4*T+2*t,2)}, v{vWB+T} offset:{(16*s+4*t)*256}")
        rd(0)
        for s in range(8):
            if s + 1 < 8:
                rd(s + 1)
                A("s_waitcnt lgkmcnt(8)")
            else:
                A("s_waitcnt lgkmcnt(0)")
            base = vS + 16 * (s % 2)
            for T in range(4):
                A(f"v_mfma_f32_32x32x16_bf16 {vr(vO+16*T,16)}, {vr(base+4*T,4)}, {vr(vKF+4*s,4)}, {vr(vO+16*T,16)}")

    A("s_waitcnt vmcnt(16)\ns_barrier")
    qproj_chunk(0)
    A("s_waitcnt vmcnt(0)\ns_barrier")
    dma_x(0, 2); dma_wq(0, 2)
    qproj_chunk(1)
    A("s_barrier")
    dma_x(1, 3); dma_wq(1, 3)
    A("s_waitcnt vmcnt(16)\ns_barrier")
    qproj_chunk(0)
    A("s_waitcnt vmcnt(0)\ns_barrier")
    qproj_chunk(1)
    A("s_barrier")
    A("s_nop 7\ns_nop 7")
    for s in range(8):
        T, hh = s // 2, s % 2
        src = vO + 16 * T + 8 * hh
        d = vQ + 4 * s
        for j in range(4):
            A(f"v_cvt_pk_bf16_f32 v{d+j}, v{src+2*j}, v{src+2*j+1}")
        A("s_nop 1")
        A(f"v_permlane32_swap_b32 v{d}, v{d+2}")
        A(f"v_permlane32_swap_b32 v{d+1}, v{d+3}")
    for r in range(64):
        A(f"v_mov_b32 v{vO+r}, 0")
    A(f"v_mov_b32 v{vNMC}, 0x7f800000\nv_mov_b32 v{vL}, 0")
    A(f"s_mov_b32 s{sLOOP}, 0")
    A("K1_LOOP:")
    for slot in range(8):
        A("s_barrier")
        for s in range(8):
            A(f"ds_read_b128 {vr(vKF+4*s,4)}, v{vKA+s} offset:{LK+slot*8192}")
        for s in range(8):
            A(f"s_waitcnt lgkmcnt({7-s})")
            c = "0" if s == 0 else vr(vS, 16)
            A(f"v_mfma_f32_32x32x16_bf16 {vr(vS,16)}, {vr(vKF+4*s,4)}, {vr(vQ+4*s,4)}, {c}")
        def rdV(u, base):
            for T in range(4):
                for t in range(2):
                    A(f"ds_read_b64_tr_b16 {vr(base+4*T+2*t,2)}, v{vVA+T} offset:{slot*8192+(16*u+8*t)*256}")
        rdV(0, vVF)
        A("s_nop 7\ns_nop 3")
        A(f"K1_SM{slot}:")
        for r in range(16):
            A(f"v_fma_f32 v{vP+r}, v{vS+r}, s{sC}, v{vNMC}")
        for r in range(16):
            A(f"v_exp_f32 v{vP+r}, v{vP+r}")
        A("s_nop 0")
        A(f"v_add_f32 v{vTS}, v{vP}, v{vP+1}\nv_add_f32 v{vTMP}, v{vP+2}, v{vP+3}")
        for r in range(4, 16, 2):
            A(f"v_add_f32 v{vTS}, v{vTS}, v{vP+r}\nv_add_f32 v{vTMP}, v{vTMP}, v{vP+r+1}")
        A(f"v_add_f32 v{vTS}, v{vTS}, v{vTMP}")
        A(f"v_cmp_nge_f32 vcc, s{sTHR}, v{vTS}")
        A(f"s_cbranch_vccnz K1_RARE{slot}")
        A(f"v_add_f32 v{vL}, v{vL}, v{vTS}")
        for j in range(8):
            A(f"v_cvt_pk_bf16_f32 v{vPK+j}, v{vP+2*j}, v{vP+2*j+1}")
        rdV(1, vKF)
        A("s_waitcnt lgkmcnt(8)")
        for T in range(4):
            A(f"v_mfma_f32_32x32x16_bf16 {vr(vO+16*T,16)}, {vr(vVF+4*T,4)}, {vr(vPK,4)}, {vr(vO+16*T,16)}")
        A("s_waitcnt lgkmcnt(0)")
        for T in range(4):
            A(f"v_mfma_f32_32x32x16_bf16 {vr(vO+16*T,16)}, {vr(vKF+4*T,4)}, {vr(vPK+4,4)}, {vr(vO+16*T,16)}")
    A(f"s_add_u32 s{sLOOP}, s{sLOOP}, 1\ns_cmp_lt_u32 s{sLOOP}, 4\ns_cbranch_scc1 K1_LOOP")
    A(f"v_mov_b32 v{vTMP}, v{vL}\ns_nop 1\nv_permlane32_swap_b32 v{vL}, v{vTMP}\nv_add_f32 v{vL}, v{vL}, v{vTMP}")
    A(f"v_rcp_f32 v{vAL}, v{vL}")
    A(f"s_mul_i32 s{sT0}, s{sB}, 6\ns_lshl_b32 s{sT1}, s{sWAVE}, 1\ns_add_u32 s{sT0}, s{sT0}, s{sT1}\ns_lshl_b32 s{sT0}, s{sT0}, 7")
    A(f"s_lshl_b32 s{sT1}, s{sH}, 2\ns_add_u32 s{sT0}, s{sT0}, s{sT1}\ns_lshl_b32 s{sT0}, s{sT0}, 10")
    A("s_nop 7")
    for T in range(4):
        for ip in range(2):
            src = vO + 16 * T + 8 * ip
            d = vKF + 4 * (2 * T + ip)
            for j in range(8):
                A(f"v_mul_f32 v{src+j}, v{src+j}, v{vAL}")
            for j in range(4):
                A(f"v_cvt_pk_bf16_f32 v{d+j}, v{src+2*j}, v{src+2*j+1}")
            A(f"buffer_store_dwordx4 {vr(d,4)}, v{vST}, s[{sWS}:{sWS+3}], s{sT0} offen offset:{T*1024+ip*512}")
    A("s_branch K1_FIN")
    for slot in range(8):
        A(f"K1_RARE{slot}:")
        A(f"v_max3_f32 v{vTMP}, v{vS}, v{vS+1}, v{vS+2}")
        for r in range(3, 15, 2):
            A(f"v_max3_f32 v{vTMP}, v{vTMP}, v{vS+r}, v{vS+r+1}")
        A(f"v_max_f32 v{vTMP}, v{vTMP}, v{vS+15}")
        A(f"v_mov_b32 v{vTMP2}, v{vTMP}\ns_nop 1\nv_permlane32_swap_b32 v{vTMP}, v{vTMP2}\nv_max_f32 v{vTMP}, v{vTMP}, v{vTMP2}")
        A(f"v_mul_f32 v{vTMP}, s{sC}, v{vTMP}")
        A(f"v_sub_f32 v{vTMP}, 0, v{vTMP}\nv_min_f32 v{vTMP}, v{vNMC}, v{vTMP}")
        A(f"v_sub_f32 v{vAL}, v{vTMP}, v{vNMC}\nv_exp_f32 v{vAL}, v{vAL}\nv_mov_b32 v{vNMC}, v{vTMP}")
        A(f"v_mul_f32 v{vL}, v{vL}, v{vAL}")
        for r in range(64):
            A(f"v_mul_f32 v{vO+r}, v{vO+r}, v{vAL}")
        A(f"s_branch K1_SM{slot}")

    A("K1_LOADER:")
    vt = VmTrack(A)
    def kv_tile(j):
        slot = j % 8
        for (srdb, lbase, vo4) in ((sK, LK, True), (sV, LV, False)):
            for g in range(2):
                A(f"s_mov_b32 m0, {lbase + slot*8192 + g*4096}\ns_add_u32 s{sT2}, s{sKVOFF}, {j*8192 + g*4096}")
                for n in range(4):
                    vo = vDK + n if vo4 else vDV
                    A(f"buffer_load_dwordx4 v{vo}, s[{srdb}:{srdb+3}], s{sT2} offen offset:{n*1024}{NT} lds")
                    vt.issue(("kv", j))
    def lwq(buf, chunk):
        dma_wq(buf, chunk)
        for _ in range(8): vt.issue(("wq", chunk))
    lwq(0, 0); lwq(1, 1)
    for j in range(3): kv_tile(j)
    vt.wait(("wq", 0)); A("s_barrier")
    vt.wait(("wq", 1)); A("s_barrier")
    lwq(0, 2)
    A("s_barrier")
    lwq(1, 3)
    vt.wait(("wq", 2)); A("s_barrier")
    vt.wait(("wq", 3)); A("s_barrier")
    A("s_barrier")
    kv_tile(3)
    vWOD = 20; vWOT = 21
    A(f"v_lshrrev_b32 v3, 5, v0\nv_and_b32 v18, 31, v0\nv_lshlrev_b32 v18, 4, v18\nv_lshl_add_u32 v{vWOD}, v3, 10, v18")
    A("v_lshrrev_b32 v3, 1, v1\nv_lshlrev_b32 v3, 4, v3\nv_and_b32 v18, 1, v1\nv_lshl_add_u32 v3, v18, 2, v3")
    A("v_lshrrev_b32 v18, 2, v2\nv_add_u32 v3, v3, v18\nv_and_b32 v18, 3, v2\nv_lshlrev_b32 v18, 3, v18")
    A(f"v_lshl_add_u32 v{vWOT}, v3, 9, v18\nv_add_u32 v{vWOT}, {LX}, v{vWOT}")
    A("v_lshlrev_b32 v22, 4, v0")
    W = 4
    for i in range(32):
        vt.wait(("kv", i)); A("s_barrier")
        if i + W < 32: kv_tile(i + W)
        if i == 6:
            A(f"s_lshr_b32 s{sT0}, s2, 1\ns_lshl_b32 s{sT0}, s{sT0}, 15\ns_and_b32 s{sT1}, s2, 1\ns_lshl_b32 s{sT1}, s{sT1}, 9\ns_add_u32 s{sT0}, s{sT0}, s{sT1}")
            for n in range(16):
                A(f"s_mov_b32 m0, {LX + n*1024}\ns_nop 0")
                A(f"buffer_load_dwordx4 v{vWOD}, s[{sWO}:{sWO+3}], s{sT0} offen lds")
                A(f"s_add_u32 s{sT0}, s{sT0}, 2048")
                vt.issue(("wo", 0))
        if i == 12:
            vt.wait(("wo", 0))
            for ct in range(16):
                for t in range(2):
                    A(f"ds_read_b64_tr_b16 {vr(32+4*ct+2*t,2)}, v{vWOT} offset:{ct*32 + t*8*512}")
            A("s_waitcnt lgkmcnt(0)")
            A(f"s_lshl_b32 s{sT0}, s2, 14\ns_add_u32 s{sT0}, s{sT0}, {WS_WO}")
            for ct in range(16):
                if ct % 4 == 0 and ct: A(f"s_add_u32 s{sT0}, s{sT0}, 4096")
                A(f"buffer_store_dwordx4 {vr(32+4*ct,4)}, v22, s[{sWS}:{sWS+3}], s{sT0} offen offset:{(ct%4)*1024}")
                vt.issue(("wost", 0))
    A("K1_FIN:")
    if stamp:
        A("s_waitcnt vmcnt(0)\ns_memrealtime s[62:63]\ns_waitcnt lgkmcnt(0)")
        A(f"s_lshl_b32 s{sT0}, s2, 2\ns_add_u32 s{sT0}, s{sT0}, s{sWAVE}\ns_lshl_b32 s{sT0}, s{sT0}, 4\ns_add_u32 s{sT0}, s{sT0}, {WS_STAMP}")
        A("v_mov_b32 v4, s60\nv_mov_b32 v5, s61\nv_mov_b32 v6, s62\nv_mov_b32 v7, s63\nv_mov_b32 v3, 0")
        A("v_cmp_eq_u32 vcc, 0, v0\ns_and_saveexec_b64 s[64:65], vcc")
        A(f"buffer_store_dwordx4 v[4:7], v3, s[{sWS}:{sWS+3}], s{sT0} offen")
    A("K1_END:\ns_endpgm")

def gen_k2(A, stamp=False):
    sWS, sOUT = 20, 24
    sWAVE = 28; sMT = 29; sNT = 30
    sT0, sT1, sT2 = 32, 33, 34
    sOA, sWA = 35, 36
    NW = 8; KS = 128 // NW
    DEPTH = 11
    A.raw(".p2align 8\noproj_kernel:")
    A("s_cmp_ge_u32 s2, 256\ns_cbranch_scc1 K2_END")
    if stamp: A("s_memrealtime s[60:61]")
    A("s_load_dwordx2 s[4:5], s[0:1], 40\ns_load_dwordx2 s[6:7], s[0:1], 56")
    A("v_lshrrev_b32 v1, 6, v0\nv_and_b32 v0, 63, v0\ns_nop 0")
    A(f"v_readfirstlane_b32 s{sWAVE}, v1")
    A(f"s_and_b32 s{sT0}, s2, 7\ns_lshr_b32 s{sT1}, s2, 3")
    A(f"s_lshr_b32 s{sMT}, s{sT0}, 1\ns_lshl_b32 s{sMT}, s{sMT}, 2\ns_and_b32 s{sT2}, s{sT1}, 3\ns_add_u32 s{sMT}, s{sMT}, s{sT2}")
    A(f"s_and_b32 s{sNT}, s{sT0}, 1\ns_lshl_b32 s{sNT}, s{sNT}, 3\ns_lshr_b32 s{sT2}, s{sT1}, 2\ns_add_u32 s{sNT}, s{sNT}, s{sT2}")
    A("v_lshlrev_b32 v2, 4, v0")
    A("v_add_u32 v3, 0x20000, v2\nv_add_u32 v4, 0x40000, v2")
    A("s_waitcnt lgkmcnt(0)")
    srd(A, sOUT, 4, 5, 8*96*512*2)
    srd(A, sWS, 6, 7, 256 << 20)
    A(f"s_mul_i32 s{sOA}, s{sMT}, {3*128}\ns_mul_i32 s{sT0}, s{sWAVE}, {KS}\ns_add_u32 s{sOA}, s{sOA}, s{sT0}\ns_lshl_b32 s{sOA}, s{sOA}, 10")
    A(f"s_lshl_b32 s{sWA}, s{sT0}, 5\ns_lshl_b32 s{sT1}, s{sNT}, 1\ns_add_u32 s{sWA}, s{sWA}, s{sT1}\ns_lshl_b32 s{sWA}, s{sWA}, 10\ns_add_u32 s{sWA}, s{sWA}, {WS_WO}")
    vACC = 8 - 0
    vB = 8
    vt = VmTrack(A)
    def load(ks):
        base = vB + (ks % DEPTH) * 20
        if ks % 4 == 0 and ks: A(f"s_add_u32 s{sOA}, s{sOA}, 4096")
        for qi in range(3):
            A(f"buffer_load_dwordx4 {vr(base+4*qi,4)}, v{2+qi}, s[{sWS}:{sWS+3}], s{sOA} offen offset:{(ks%4)*1024}")
            vt.issue(ks)
        for ci in range(2):
            A(f"buffer_load_dwordx4 {vr(base+12+4*ci,4)}, v2, s[{sWS}:{sWS+3}], s{sWA} offen offset:{ci*1024}")
            vt.issue(ks)
        A(f"s_add_u32 s{sWA}, s{sWA}, 32768")
    for ks in range(min(DEPTH, KS)): load(ks)
    for r in range(24): A(f"v_accvgpr_write_b32 a{r}, 0")
    for ks in range(KS):
        vt.wait(ks)
        base = vB + (ks % DEPTH) * 20
        for qi in range(3):
            for ci in range(2):
                t = 4 * (qi * 2 + ci)
                A(f"v_mfma_f32_16x16x32_bf16 a[{t}:{t+3}], {vr(base+12+4*ci,4)}, {vr(base+4*qi,4)}, a[{t}:{t+3}]")
        if ks + DEPTH < KS: load(ks + DEPTH)
    A("s_nop 7\ns_nop 3")
    A(f"s_mul_i32 s{sT0}, s{sWAVE}, 6144\nv_add_u32 v5, s{sT0}, v2")
    for t in range(6):
        A(f"ds_write_b128 v5, a[{4*t}:{4*t+3}] offset:{t*1024}")
    A("s_waitcnt lgkmcnt(0)\ns_barrier")
    A(f"s_cmp_ge_u32 s{sWAVE}, 6\ns_cbranch_scc1 K2_FIN")
    A(f"s_lshl_b32 s{sT0}, s{sWAVE}, 10\nv_add_u32 v5, s{sT0}, v2")
    for w in range(NW):
        A(f"ds_read_b128 {vr(8+4*w,4)}, v5 offset:{w*6144}")
    A("s_waitcnt lgkmcnt(0)")
    for w in range(1, NW):
        for r in range(4):
            A(f"v_add_f32 v{8+r}, v{8+r}, v{8+4*w+r}")
    A("v_cvt_pk_bf16_f32 v8, v8, v9\nv_cvt_pk_bf16_f32 v9, v10, v11")
    A(f"s_lshr_b32 s{sT0}, s{sWAVE}, 1\ns_lshl_b32 s{sT0}, s{sT0}, 4\ns_mul_i32 s{sT1}, s{sMT}, 48\ns_add_u32 s{sT0}, s{sT0}, s{sT1}\ns_lshl_b32 s{sT0}, s{sT0}, 10")
    A(f"s_and_b32 s{sT1}, s{sWAVE}, 1\ns_lshl_b32 s{sT1}, s{sT1}, 5\ns_add_u32 s{sT0}, s{sT0}, s{sT1}\ns_lshl_b32 s{sT1}, s{sNT}, 6\ns_add_u32 s{sT0}, s{sT0}, s{sT1}")
    A("v_and_b32 v6, 15, v0\nv_lshlrev_b32 v6, 10, v6\nv_lshrrev_b32 v7, 4, v0\nv_lshl_add_u32 v6, v7, 3, v6")
    A(f"buffer_store_dwordx2 v[8:9], v6, s[{sOUT}:{sOUT+3}], s{sT0} offen")
    A("K2_FIN:")
    if stamp:
        A("s_waitcnt vmcnt(0)\ns_memrealtime s[62:63]\ns_waitcnt lgkmcnt(0)")
        A(f"s_lshl_b32 s{sT0}, s2, 3\ns_add_u32 s{sT0}, s{sT0}, s{sWAVE}\ns_lshl_b32 s{sT0}, s{sT0}, 4\ns_add_u32 s{sT0}, s{sT0}, {WS_STAMP + 65536}")
        A("v_mov_b32 v4, s60\nv_mov_b32 v5, s61\nv_mov_b32 v6, s62\nv_mov_b32 v7, s63\nv_mov_b32 v3, 0")
        A("v_cmp_eq_u32 vcc, 0, v0\ns_and_saveexec_b64 s[64:65], vcc")
        A(f"buffer_store_dwordx4 v[4:7], v3, s[{sWS}:{sWS+3}], s{sT0} offen")
    A("K2_END:\ns_endpgm")

def kd(name, vgpr, accum, sgpr=80):
    return f""".p2align 6
.amdhsa_kernel {name}
  .amdhsa_next_free_vgpr {vgpr}
  .amdhsa_next_free_sgpr {sgpr}
  .amdhsa_accum_offset {accum}
  .amdhsa_group_segment_fixed_size 0
  .amdhsa_kernarg_size 64
  .amdhsa_user_sgpr_count 2
  .amdhsa_user_sgpr_kernarg_segment_ptr 1
  .amdhsa_system_sgpr_workgroup_id_x 1
.end_amdhsa_kernel
"""

def main(stamp=False):
    A = Asm()
    A.raw(f"; @launch kernel=attn_kernel grid=(256,1,1) block=(256,1,1) lds={LDS_BYTES}")
    A.raw(f"; @launch kernel=oproj_kernel grid=(256,1,1) block=(512,1,1) lds={8*6144}")
    A.raw('.amdgcn_target "amdgcn-amd-amdhsa--gfx950"\n.text')
    A.raw(".globl attn_kernel\n.type attn_kernel,@function\n.globl oproj_kernel\n.type oproj_kernel,@function")
    gen_k1(A, stamp)
    gen_k2(A, stamp)
    A.raw('.section .rodata,"a"')
    A.raw(kd("attn_kernel", 256, 256))
    A.raw(kd("oproj_kernel", 252, 228))
    return A.text()

if __name__ == "__main__":
    stamp = "--stamp" in sys.argv
    out = [a for a in sys.argv[1:] if not a.startswith("--")][0]
    open(out, "w").write(main(stamp))
```

```python
import sys, struct

def f32bits(x):
    return struct.unpack("<I", struct.pack("<f", x))[0]

class Asm:
    def __init__(self):
        self.o = []
    def __call__(self, s):
        for line in s.split("\n"):
            self.o.append("    " + line.strip() if not line.strip().endswith(":") else line.strip())
    def raw(self, s):
        self.o.append(s)
    def text(self):
        return "\n".join(self.o) + "\n"

def vr(base, n):
    return f"v[{base}:{base+n-1}]" if n > 1 else f"v{base}"

WS_O = 0
WS_WO = 8 << 20
WS_STAMP = 16 << 20

LK = 0
LV = 65536
LX = 131072
WQ_BUF = [24 * 1024, 112 * 1024]
X_BUF = [[88 * 1024, 96 * 1024, 104 * 1024],
         [56 * 1024, 144 * 1024, 152 * 1024]]
LDS_BYTES = 160 * 1024

SCALE_LOG2E = (128 ** -0.5) * 1.4426950408889634
THRESH = 1024.0

NT = " nt"

def srd(A, d, lo, hi, nbytes):
    A(f"s_mov_b32 s{d}, s{lo}")
    A(f"s_and_b32 s{d+1}, s{hi}, 0xffff")
    A(f"s_mov_b32 s{d+2}, {hex(nbytes)}")
    A(f"s_mov_b32 s{d+3}, 0x20000")

class VmTrack:
    def __init__(self, A):
        self.A = A; self.ops = []; self.done = -1
    def issue(self, tag):
        self.ops.append(tag)
    def wait(self, tag):
        idx = max(i for i, t in enumerate(self.ops) if t == tag)
        if idx <= self.done: return
        n = len(self.ops) - 1 - idx
        n = min(n, 63)
        self.done = len(self.ops) - 1 - n
        self.A(f"s_waitcnt vmcnt({n})")

def stamp_at(A, stamp, i):
    if stamp: A(f"s_memrealtime s[{64+2*i}:{65+2*i}]\ns_waitcnt lgkmcnt(0)")

def stamp_store(A, sWS, sT0, widx_code, base, n=8):
    A("s_waitcnt vmcnt(0)")
    A(f"s_memrealtime s[{64+2*(n-1)}:{65+2*(n-1)}]\ns_waitcnt lgkmcnt(0)")
    A(widx_code)
    A(f"s_lshl_b32 s{sT0}, s{sT0}, 5\ns_add_u32 s{sT0}, s{sT0}, {base}")
    for i in range(8): A(f"v_mov_b32 v{4+i}, s{64+2*i}")
    A("v_mov_b32 v3, 0\nv_cmp_eq_u32 vcc, 0, v0\ns_and_saveexec_b64 s[60:61], vcc")
    A(f"buffer_store_dwordx4 v[4:7], v3, s[{sWS}:{sWS+3}], s{sT0} offen")
    A(f"buffer_store_dwordx4 v[8:11], v3, s[{sWS}:{sWS+3}], s{sT0} offen offset:16")

def gen_k1(A, stamp=False):
    sX, sK, sV, sWQ, sWO, sWS = 20, 24, 28, 32, 36, 40
    sWAVE, sB, sH = 44, 45, 46
    sKVOFF = 47
    sT0, sT1, sT2, sT3 = 48, 49, 50, 51
    sC, sTHR = 52, 53
    sXG = 54
    sWQG = 55
    sXL0, sXL1 = 56, 57
    sLOOP = 58
    A.raw(".p2align 8\nattn_kernel:")
    A("s_cmp_ge_u32 s2, 256\ns_cbranch_scc1 K1_END")
    if stamp:
        for i in range(8): A(f"s_mov_b64 s[{64+2*i}:{65+2*i}], 0")
    stamp_at(A, stamp, 0)
    A("s_load_dwordx16 s[4:19], s[0:1], 0")
    A("v_lshrrev_b32 v1, 6, v0\nv_and_b32 v0, 63, v0\ns_nop 0")
    A(f"v_readfirstlane_b32 s{sWAVE}, v1")
    A(f"s_and_b32 s{sT0}, s2, 7\ns_lshr_b32 s{sT1}, s2, 3\ns_and_b32 s{sT2}, s{sT1}, 3")
    A(f"s_lshl_b32 s{sH}, s{sT0}, 2\ns_add_u32 s{sH}, s{sH}, s{sT2}\ns_lshr_b32 s{sB}, s{sT1}, 2")
    A(f"s_lshl_b32 s{sKVOFF}, s{sB}, 5\ns_add_u32 s{sKVOFF}, s{sKVOFF}, s{sH}\ns_lshl_b32 s{sKVOFF}, s{sKVOFF}, 18")
    A(f"s_mov_b32 s{sC}, {hex(f32bits(SCALE_LOG2E))}\ns_mov_b32 s{sTHR}, {hex(f32bits(THRESH))}")
    A("v_lshrrev_b32 v1, 4, v0\nv_and_b32 v2, 15, v0")
    vDKc = 4
    A("v_xor_b32 v3, v2, v1")
    for n in range(4):
        A(f"v_xor_b32 v{vDKc+n}, {4*n}, v3\nv_lshlrev_b32 v{vDKc+n}, 4, v{vDKc+n}")
    vDK = 8
    vDX = 12
    for n in range(4):
        A(f"v_lshl_add_u32 v{vDK+n}, v1, 8, v{vDKc+n}")
        A(f"v_lshl_add_u32 v{vDX+n}, v1, 10, v{vDKc+n}")
    vDV, vDW = 16, 17
    A("v_lshlrev_b32 v3, 2, v1\nv_xor_b32 v3, v3, v2\nv_lshlrev_b32 v3, 4, v3")
    A(f"v_lshl_add_u32 v{vDV}, v1, 8, v3")
    A(f"v_lshl_add_u32 v{vDW}, v1, 13, v3")
    A("s_waitcnt lgkmcnt(0)")
    stamp_at(A, stamp == 2, 1)
    srd(A, sX, 4, 5, 8*96*512*2)
    srd(A, sK, 6, 7, 64 << 20)
    srd(A, sV, 8, 9, 64 << 20)
    srd(A, sWQ, 10, 11, 4 << 20)
    srd(A, sWO, 12, 13, 4 << 20)
    srd(A, sWS, 18, 19, 256 << 20)
    A(f"s_mul_i32 s{sXG}, s{sB}, 96\ns_lshl_b32 s{sT0}, s{sWAVE}, 5\ns_add_u32 s{sXG}, s{sXG}, s{sT0}\ns_lshl_b32 s{sXG}, s{sXG}, 10")
    A(f"s_lshl_b32 s{sWQG}, s{sH}, 8")
    A(f"s_mov_b32 s{sXL0}, {X_BUF[0][0]}\ns_mov_b32 s{sXL1}, {X_BUF[1][0]}")
    A(f"s_cmp_eq_u32 s{sWAVE}, 1\ns_cselect_b32 s{sXL0}, {X_BUF[0][1]}, s{sXL0}\ns_cselect_b32 s{sXL1}, {X_BUF[1][1]}, s{sXL1}")
    A(f"s_cmp_eq_u32 s{sWAVE}, 2\ns_cselect_b32 s{sXL0}, {X_BUF[0][2]}, s{sXL0}\ns_cselect_b32 s{sXL1}, {X_BUF[1][2]}, s{sXL1}")

    def dma_wq(buf, chunk):
        A(f"s_lshl_b32 s{sT0}, s{sWAVE}, 13\ns_add_u32 s{sT0}, s{sT0}, {WQ_BUF[buf]}")
        A(f"s_lshl_b32 s{sT1}, s{sWAVE}, 18\ns_add_u32 s{sT1}, s{sT1}, s{sWQG}\ns_add_u32 s{sT1}, s{sT1}, {chunk*128*8192}")
        for n in range(8):
            A(f"s_mov_b32 m0, s{sT0}\ns_add_u32 s{sT0}, s{sT0}, 1024")
            A(f"buffer_load_dwordx4 v{vDW}, s[{sWQ}:{sWQ+3}], s{sT1} offen lds")
            A(f"s_add_u32 s{sT1}, s{sT1}, {4*8192}")
    def dma_x(buf, chunk):
        sXL = sXL0 if buf == 0 else sXL1
        A(f"s_mov_b32 s{sT0}, s{sXL}\ns_add_u32 s{sT1}, s{sXG}, {chunk*256}")
        for n in range(8):
            A(f"s_mov_b32 m0, s{sT0}\ns_add_u32 s{sT0}, s{sT0}, 1024")
            A(f"buffer_load_dwordx4 v{vDX+n%4}, s[{sX}:{sX+3}], s{sT1} offen lds")
            A(f"s_add_u32 s{sT1}, s{sT1}, 4096")

    A(f"s_cmp_eq_u32 s{sWAVE}, 3\ns_cbranch_scc1 K1_LOADER")

    vKA = 20
    vVA = 28
    vWA = 32
    vXA = 36
    vWB = 44
    vNMC, vL, vTS, vTMP, vTMP2, vAL = 48, 49, 50, 51, 52, 53
    vST = 54
    vQ = 64
    vO = 96
    vS = 160
    vP = 176
    vPK = 192
    vKF = 200
    vVF = 232

    dma_x(0, 0); dma_wq(0, 0)
    dma_x(1, 1); dma_wq(1, 1)
    stamp_at(A, stamp == 2, 2)
    A("v_and_b32 v3, 31, v0\nv_lshrrev_b32 v18, 5, v0")
    A("v_and_b32 v19, 15, v3\nv_xor_b32 v19, v19, v18\nv_lshlrev_b32 v19, 4, v19")
    A(f"v_lshl_add_u32 v{vKA}, v3, 8, v19")
    for s in range(1, 8):
        A(f"v_xor_b32 v{vKA+s}, {32*s}, v{vKA}")
    A("v_lshrrev_b32 v19, 2, v2")
    A("v_and_b32 v56, 1, v1\nv_lshlrev_b32 v56, 5, v56")
    A("v_and_b32 v57, 3, v2\nv_lshlrev_b32 v57, 3, v57")
    A("v_add_u32 v56, v56, v57")
    for T in range(4):
        A(f"v_xor_b32 v57, {T}, v19\nv_lshl_add_u32 v57, v57, 6, v56")
        A(f"v_lshl_add_u32 v58, v18, 2, v19\nv_lshl_add_u32 v{vVA+T}, v58, 8, v57")
        A(f"v_add_u32 v{vVA+T}, {LV}, v{vVA+T}")
        A(f"v_lshl_add_u32 v58, v18, 3, v19\nv_lshl_add_u32 v{vWA+T}, v58, 8, v57")
    A("v_lshrrev_b32 v57, 4, v3\nv_lshlrev_b32 v57, 17, v57\nv_and_b32 v58, 15, v3\nv_lshl_add_u32 v57, v58, 4, v57")
    A(f"v_lshl_add_u32 v{vST}, v18, 8, v57")
    for r in range(64):
        A(f"v_mov_b32 v{vO+r}, 0")

    def qproj_chunk(buf):
        sXL = sXL0 if buf == 0 else sXL1
        for s in range(8):
            A(f"v_add_u32 v{vXA+s}, s{sXL}, v{vKA+s}")
        for T in range(4):
            A(f"v_add_u32 v{vWB+T}, {WQ_BUF[buf]}, v{vWA+T}")
        for s in range(8):
            A(f"ds_read_b128 {vr(vKF+4*s,4)}, v{vXA+s}")
        def rd(s):
            base = vS + 16 * (s % 2)
            for T in range(4):
                for t in range(2):
                    A(f"ds_read_b64_tr_b16 {vr(base+4*T+2*t,2)}, v{vWB+T} offset:{(16*s+4*t)*256}")
        rd(0)
        for s in range(8):
            if s + 1 < 8:
                rd(s + 1)
                A("s_waitcnt lgkmcnt(8)")
            else:
                A("s_waitcnt lgkmcnt(0)")
            base = vS + 16 * (s % 2)
            for T in range(4):
                A(f"v_mfma_f32_32x32x16_bf16 {vr(vO+16*T,16)}, {vr(base+4*T,4)}, {vr(vKF+4*s,4)}, {vr(vO+16*T,16)}")

    stamp_at(A, stamp == 2, 3)
    A("s_waitcnt vmcnt(16)")
    stamp_at(A, stamp == 2, 4)
    A("s_barrier")
    stamp_at(A, stamp == 2, 5)
    stamp_at(A, stamp == 1, 1)
    qproj_chunk(0)
    stamp_at(A, stamp == 2, 6)
    A("s_waitcnt vmcnt(0)\ns_barrier")
    dma_x(0, 2); dma_wq(0, 2)
    qproj_chunk(1)
    A("s_barrier")
    dma_x(1, 3); dma_wq(1, 3)
    A("s_waitcnt vmcnt(16)\ns_barrier")
    stamp_at(A, stamp == 1, 2)
    qproj_chunk(0)
    A("s_waitcnt vmcnt(0)\ns_barrier")
    qproj_chunk(1)
    A("s_barrier")
    stamp_at(A, stamp == 1, 3)
    A("s_nop 7\ns_nop 7")
    for s in range(8):
        T, hh = s // 2, s % 2
        src = vO + 16 * T + 8 * hh
        d = vQ + 4 * s
        for j in range(4):
            A(f"v_cvt_pk_bf16_f32 v{d+j}, v{src+2*j}, v{src+2*j+1}")
        A("s_nop 1")
        A(f"v_permlane32_swap_b32 v{d}, v{d+2}")
        A(f"v_permlane32_swap_b32 v{d+1}, v{d+3}")
    for r in range(64):
        A(f"v_mov_b32 v{vO+r}, 0")
    A(f"v_mov_b32 v{vNMC}, 0x7f800000\nv_mov_b32 v{vL}, 0")
    A(f"s_mov_b32 s{sLOOP}, 0")
    A("K1_LOOP:")
    for slot in range(8):
        A("s_barrier")
        for s in range(8):
            A(f"ds_read_b128 {vr(vKF+4*s,4)}, v{vKA+s} offset:{LK+slot*8192}")
        for s in range(8):
            A(f"s_waitcnt lgkmcnt({7-s})")
            c = "0" if s == 0 else vr(vS, 16)
            A(f"v_mfma_f32_32x32x16_bf16 {vr(vS,16)}, {vr(vKF+4*s,4)}, {vr(vQ+4*s,4)}, {c}")
        def rdV(u, base):
            for T in range(4):
                for t in range(2):
                    A(f"ds_read_b64_tr_b16 {vr(base+4*T+2*t,2)}, v{vVA+T} offset:{slot*8192+(16*u+8*t)*256}")
        rdV(0, vVF)
        A("s_nop 7\ns_nop 3")
        A(f"K1_SM{slot}:")
        for r in range(16):
            A(f"v_fma_f32 v{vP+r}, v{vS+r}, s{sC}, v{vNMC}")
        for r in range(16):
            A(f"v_exp_f32 v{vP+r}, v{vP+r}")
        A("s_nop 0")
        A(f"v_add_f32 v{vTS}, v{vP}, v{vP+1}\nv_add_f32 v{vTMP}, v{vP+2}, v{vP+3}")
        for r in range(4, 16, 2):
            A(f"v_add_f32 v{vTS}, v{vTS}, v{vP+r}\nv_add_f32 v{vTMP}, v{vTMP}, v{vP+r+1}")
        A(f"v_add_f32 v{vTS}, v{vTS}, v{vTMP}")
        A(f"v_cmp_nge_f32 vcc, s{sTHR}, v{vTS}")
        A(f"s_cbranch_vccnz K1_RARE{slot}")
        A(f"v_add_f32 v{vL}, v{vL}, v{vTS}")
        for j in range(8):
            A(f"v_cvt_pk_bf16_f32 v{vPK+j}, v{vP+2*j}, v{vP+2*j+1}")
        rdV(1, vKF)
        A("s_waitcnt lgkmcnt(8)")
        for T in range(4):
            A(f"v_mfma_f32_32x32x16_bf16 {vr(vO+16*T,16)}, {vr(vVF+4*T,4)}, {vr(vPK,4)}, {vr(vO+16*T,16)}")
        A("s_waitcnt lgkmcnt(0)")
        for T in range(4):
            A(f"v_mfma_f32_32x32x16_bf16 {vr(vO+16*T,16)}, {vr(vKF+4*T,4)}, {vr(vPK+4,4)}, {vr(vO+16*T,16)}")
    if stamp:
        A(f"s_cmp_eq_u32 s{sLOOP}, 0\ns_cbranch_scc0 K1_NS4")
        stamp_at(A, stamp == 1, 4)
        A("K1_NS4:")
        A(f"s_cmp_eq_u32 s{sLOOP}, 2\ns_cbranch_scc0 K1_NS5")
        stamp_at(A, stamp == 1, 5)
        A("K1_NS5:")
    A(f"s_add_u32 s{sLOOP}, s{sLOOP}, 1\ns_cmp_lt_u32 s{sLOOP}, 4\ns_cbranch_scc1 K1_LOOP")
    stamp_at(A, stamp == 1, 6)
    A(f"v_mov_b32 v{vTMP}, v{vL}\ns_nop 1\nv_permlane32_swap_b32 v{vL}, v{vTMP}\nv_add_f32 v{vL}, v{vL}, v{vTMP}")
    A(f"v_rcp_f32 v{vAL}, v{vL}")
    A(f"s_mul_i32 s{sT0}, s{sB}, 6\ns_lshl_b32 s{sT1}, s{sWAVE}, 1\ns_add_u32 s{sT0}, s{sT0}, s{sT1}\ns_lshl_b32 s{sT0}, s{sT0}, 7")
    A(f"s_lshl_b32 s{sT1}, s{sH}, 2\ns_add_u32 s{sT0}, s{sT0}, s{sT1}\ns_lshl_b32 s{sT0}, s{sT0}, 10")
    A("s_nop 7")
    for T in range(4):
        for ip in range(2):
            src = vO + 16 * T + 8 * ip
            d = vKF + 4 * (2 * T + ip)
            for j in range(8):
                A(f"v_mul_f32 v{src+j}, v{src+j}, v{vAL}")
            for j in range(4):
                A(f"v_cvt_pk_bf16_f32 v{d+j}, v{src+2*j}, v{src+2*j+1}")
            A(f"buffer_store_dwordx4 {vr(d,4)}, v{vST}, s[{sWS}:{sWS+3}], s{sT0} offen offset:{T*1024+ip*512}")
    A("s_branch K1_FIN")
    for slot in range(8):
        A(f"K1_RARE{slot}:")
        A(f"v_max3_f32 v{vTMP}, v{vS}, v{vS+1}, v{vS+2}")
        for r in range(3, 15, 2):
            A(f"v_max3_f32 v{vTMP}, v{vTMP}, v{vS+r}, v{vS+r+1}")
        A(f"v_max_f32 v{vTMP}, v{vTMP}, v{vS+15}")
        A(f"v_mov_b32 v{vTMP2}, v{vTMP}\ns_nop 1\nv_permlane32_swap_b32 v{vTMP}, v{vTMP2}\nv_max_f32 v{vTMP}, v{vTMP}, v{vTMP2}")
        A(f"v_mul_f32 v{vTMP}, s{sC}, v{vTMP}")
        A(f"v_sub_f32 v{vTMP}, 0, v{vTMP}\nv_min_f32 v{vTMP}, v{vNMC}, v{vTMP}")
        A(f"v_sub_f32 v{vAL}, v{vTMP}, v{vNMC}\nv_exp_f32 v{vAL}, v{vAL}\nv_mov_b32 v{vNMC}, v{vTMP}")
        A(f"v_mul_f32 v{vL}, v{vL}, v{vAL}")
        for r in range(64):
            A(f"v_mul_f32 v{vO+r}, v{vO+r}, v{vAL}")
        A(f"s_branch K1_SM{slot}")

    A("K1_LOADER:")
    vt = VmTrack(A)
    def kv_tile(j):
        slot = j % 8
        for (srdb, lbase, vo4) in ((sK, LK, True), (sV, LV, False)):
            for g in range(2):
                A(f"s_mov_b32 m0, {lbase + slot*8192 + g*4096}\ns_add_u32 s{sT2}, s{sKVOFF}, {j*8192 + g*4096}")
                for n in range(4):
                    vo = vDK + n if vo4 else vDV
                    A(f"buffer_load_dwordx4 v{vo}, s[{srdb}:{srdb+3}], s{sT2} offen offset:{n*1024}{NT} lds")
                    vt.issue(("kv", j))
    def lwq(buf, chunk):
        dma_wq(buf, chunk)
        for _ in range(8): vt.issue(("wq", chunk))
    lwq(0, 0); lwq(1, 1)
    for j in range(3): kv_tile(j)
    vt.wait(("wq", 0)); A("s_barrier")
    vt.wait(("wq", 1)); A("s_barrier")
    lwq(0, 2)
    A("s_barrier")
    lwq(1, 3)
    vt.wait(("wq", 2)); A("s_barrier")
    vt.wait(("wq", 3)); A("s_barrier")
    A("s_barrier")
    kv_tile(3)
    vWOD = 20; vWOT = 21
    A(f"v_lshrrev_b32 v3, 5, v0\nv_and_b32 v18, 31, v0\nv_lshlrev_b32 v18, 4, v18\nv_lshl_add_u32 v{vWOD}, v3, 10, v18")
    A("v_lshrrev_b32 v3, 1, v1\nv_lshlrev_b32 v3, 4, v3\nv_and_b32 v18, 1, v1\nv_lshl_add_u32 v3, v18, 2, v3")
    A("v_lshrrev_b32 v18, 2, v2\nv_add_u32 v3, v3, v18\nv_and_b32 v18, 3, v2\nv_lshlrev_b32 v18, 3, v18")
    A(f"v_lshl_add_u32 v{vWOT}, v3, 9, v18\nv_add_u32 v{vWOT}, {LX}, v{vWOT}")
    A("v_lshlrev_b32 v22, 4, v0")
    W = 4
    for i in range(32):
        vt.wait(("kv", i)); A("s_barrier")
        if i + W < 32: kv_tile(i + W)
        if i == 6:
            A(f"s_lshr_b32 s{sT0}, s2, 1\ns_lshl_b32 s{sT0}, s{sT0}, 15\ns_and_b32 s{sT1}, s2, 1\ns_lshl_b32 s{sT1}, s{sT1}, 9\ns_add_u32 s{sT0}, s{sT0}, s{sT1}")
            for n in range(16):
                A(f"s_mov_b32 m0, {LX + n*1024}\ns_nop 0")
                A(f"buffer_load_dwordx4 v{vWOD}, s[{sWO}:{sWO+3}], s{sT0} offen lds")
                A(f"s_add_u32 s{sT0}, s{sT0}, 2048")
                vt.issue(("wo", 0))
        if i == 12:
            vt.wait(("wo", 0))
            for ct in range(16):
                for t in range(2):
                    A(f"ds_read_b64_tr_b16 {vr(32+4*ct+2*t,2)}, v{vWOT} offset:{ct*32 + t*8*512}")
            A("s_waitcnt lgkmcnt(0)")
            A(f"s_lshl_b32 s{sT0}, s2, 14\ns_add_u32 s{sT0}, s{sT0}, {WS_WO}")
            for ct in range(16):
                if ct % 4 == 0 and ct: A(f"s_add_u32 s{sT0}, s{sT0}, 4096")
                A(f"buffer_store_dwordx4 {vr(32+4*ct,4)}, v22, s[{sWS}:{sWS+3}], s{sT0} offen offset:{(ct%4)*1024}")
                vt.issue(("wost", 0))
    A("K1_FIN:")
    if stamp:
        stamp_store(A, sWS, sT0, f"s_lshl_b32 s{sT0}, s2, 2\ns_add_u32 s{sT0}, s{sT0}, s{sWAVE}", WS_STAMP)
    A("K1_END:\ns_endpgm")

def gen_k2(A, stamp=False):
    sWS, sOUT = 20, 24
    sWAVE = 28; sMT = 29; sNT = 30
    sT0, sT1, sT2 = 32, 33, 34
    sOA, sWA = 35, 36
    NW = 8; KS = 128 // NW
    DEPTH = 11
    A.raw(".p2align 8\noproj_kernel:")
    A("s_cmp_ge_u32 s2, 256\ns_cbranch_scc1 K2_END")
    if stamp:
        for i in range(8): A(f"s_mov_b64 s[{64+2*i}:{65+2*i}], 0")
    stamp_at(A, stamp, 0)
    A("s_load_dwordx2 s[4:5], s[0:1], 40\ns_load_dwordx2 s[6:7], s[0:1], 56")
    A("v_lshrrev_b32 v1, 6, v0\nv_and_b32 v0, 63, v0\ns_nop 0")
    A(f"v_readfirstlane_b32 s{sWAVE}, v1")
    A(f"s_and_b32 s{sT0}, s2, 7\ns_lshr_b32 s{sT1}, s2, 3")
    A(f"s_lshr_b32 s{sMT}, s{sT0}, 1\ns_lshl_b32 s{sMT}, s{sMT}, 2\ns_and_b32 s{sT2}, s{sT1}, 3\ns_add_u32 s{sMT}, s{sMT}, s{sT2}")
    A(f"s_and_b32 s{sNT}, s{sT0}, 1\ns_lshl_b32 s{sNT}, s{sNT}, 3\ns_lshr_b32 s{sT2}, s{sT1}, 2\ns_add_u32 s{sNT}, s{sNT}, s{sT2}")
    A("v_lshlrev_b32 v2, 4, v0")
    A("v_add_u32 v3, 0x20000, v2\nv_add_u32 v4, 0x40000, v2")
    A("s_waitcnt lgkmcnt(0)")
    srd(A, sOUT, 4, 5, 8*96*512*2)
    srd(A, sWS, 6, 7, 256 << 20)
    A(f"s_mul_i32 s{sOA}, s{sMT}, {3*128}\ns_mul_i32 s{sT0}, s{sWAVE}, {KS}\ns_add_u32 s{sOA}, s{sOA}, s{sT0}\ns_lshl_b32 s{sOA}, s{sOA}, 10")
    A(f"s_lshl_b32 s{sWA}, s{sT0}, 5\ns_lshl_b32 s{sT1}, s{sNT}, 1\ns_add_u32 s{sWA}, s{sWA}, s{sT1}\ns_lshl_b32 s{sWA}, s{sWA}, 10\ns_add_u32 s{sWA}, s{sWA}, {WS_WO}")
    vACC = 8 - 0
    vB = 8
    vt = VmTrack(A)
    def load(ks):
        base = vB + (ks % DEPTH) * 20
        if ks % 4 == 0 and ks: A(f"s_add_u32 s{sOA}, s{sOA}, 4096")
        for qi in range(3):
            A(f"buffer_load_dwordx4 {vr(base+4*qi,4)}, v{2+qi}, s[{sWS}:{sWS+3}], s{sOA} offen offset:{(ks%4)*1024}")
            vt.issue(ks)
        for ci in range(2):
            A(f"buffer_load_dwordx4 {vr(base+12+4*ci,4)}, v2, s[{sWS}:{sWS+3}], s{sWA} offen offset:{ci*1024}")
            vt.issue(ks)
        A(f"s_add_u32 s{sWA}, s{sWA}, 32768")
    for ks in range(min(DEPTH, KS)): load(ks)
    for r in range(24): A(f"v_accvgpr_write_b32 a{r}, 0")
    for ks in range(KS):
        vt.wait(ks)
        base = vB + (ks % DEPTH) * 20
        for qi in range(3):
            for ci in range(2):
                t = 4 * (qi * 2 + ci)
                A(f"v_mfma_f32_16x16x32_bf16 a[{t}:{t+3}], {vr(base+12+4*ci,4)}, {vr(base+4*qi,4)}, a[{t}:{t+3}]")
        if ks + DEPTH < KS: load(ks + DEPTH)
    A("s_nop 7\ns_nop 3")
    A(f"s_mul_i32 s{sT0}, s{sWAVE}, 6144\nv_add_u32 v5, s{sT0}, v2")
    for t in range(6):
        A(f"ds_write_b128 v5, a[{4*t}:{4*t+3}] offset:{t*1024}")
    A("s_waitcnt lgkmcnt(0)\ns_barrier")
    A(f"s_cmp_ge_u32 s{sWAVE}, 6\ns_cbranch_scc1 K2_FIN")
    A(f"s_lshl_b32 s{sT0}, s{sWAVE}, 10\nv_add_u32 v5, s{sT0}, v2")
    for w in range(NW):
        A(f"ds_read_b128 {vr(8+4*w,4)}, v5 offset:{w*6144}")
    A("s_waitcnt lgkmcnt(0)")
    for w in range(1, NW):
        for r in range(4):
            A(f"v_add_f32 v{8+r}, v{8+r}, v{8+4*w+r}")
    A("v_cvt_pk_bf16_f32 v8, v8, v9\nv_cvt_pk_bf16_f32 v9, v10, v11")
    A(f"s_lshr_b32 s{sT0}, s{sWAVE}, 1\ns_lshl_b32 s{sT0}, s{sT0}, 4\ns_mul_i32 s{sT1}, s{sMT}, 48\ns_add_u32 s{sT0}, s{sT0}, s{sT1}\ns_lshl_b32 s{sT0}, s{sT0}, 10")
    A(f"s_and_b32 s{sT1}, s{sWAVE}, 1\ns_lshl_b32 s{sT1}, s{sT1}, 5\ns_add_u32 s{sT0}, s{sT0}, s{sT1}\ns_lshl_b32 s{sT1}, s{sNT}, 6\ns_add_u32 s{sT0}, s{sT0}, s{sT1}")
    A("v_and_b32 v6, 15, v0\nv_lshlrev_b32 v6, 10, v6\nv_lshrrev_b32 v7, 4, v0\nv_lshl_add_u32 v6, v7, 3, v6")
    A(f"buffer_store_dwordx2 v[8:9], v6, s[{sOUT}:{sOUT+3}], s{sT0} offen")
    A("K2_FIN:")
    if stamp:
        stamp_store(A, sWS, sT0, f"s_lshl_b32 s{sT0}, s2, 3\ns_add_u32 s{sT0}, s{sT0}, s{sWAVE}", WS_STAMP + 65536)
    A("K2_END:\ns_endpgm")

def kd(name, vgpr, accum, sgpr=96):
    return f""".p2align 6
.amdhsa_kernel {name}
  .amdhsa_next_free_vgpr {vgpr}
  .amdhsa_next_free_sgpr {sgpr}
  .amdhsa_accum_offset {accum}
  .amdhsa_group_segment_fixed_size 0
  .amdhsa_kernarg_size 64
  .amdhsa_user_sgpr_count 2
  .amdhsa_user_sgpr_kernarg_segment_ptr 1
  .amdhsa_system_sgpr_workgroup_id_x 1
.end_amdhsa_kernel
"""

def main(stamp=False):
    A = Asm()
    A.raw(f"; @launch kernel=attn_kernel grid=(256,1,1) block=(256,1,1) lds={LDS_BYTES}")
    A.raw(f"; @launch kernel=oproj_kernel grid=(256,1,1) block=(512,1,1) lds={8*6144}")
    A.raw('.amdgcn_target "amdgcn-amd-amdhsa--gfx950"\n.text')
    A.raw(".globl attn_kernel\n.type attn_kernel,@function\n.globl oproj_kernel\n.type oproj_kernel,@function")
    gen_k1(A, stamp)
    gen_k2(A, stamp)
    A.raw('.section .rodata,"a"')
    A.raw(kd("attn_kernel", 256, 256))
    A.raw(kd("oproj_kernel", 252, 228))
    return A.text()

if __name__ == "__main__":
    stamp = 1 if "--stamp" in sys.argv else (2 if "--stamp2" in sys.argv else 0)
    out = [a for a in sys.argv[1:] if not a.startswith("--")][0]
    open(out, "w").write(main(stamp))
```

```python
import sys, struct
from gen1 import Asm, vr, f32bits, srd, VmTrack, stamp_at, stamp_store, gen_k2, kd, WS_O, WS_WO, WS_STAMP, SCALE_LOG2E, THRESH

KB = 1024
LK = 0
LV = 64 * KB
LX = 128 * KB
WB = [(128*KB, 136*KB), (144*KB, 64*KB), (8*KB, 16*KB), (72*KB, 80*KB), (24*KB, 32*KB), (88*KB, 96*KB)]
XB = [40 * KB, 104 * KB]
FL = 152 * KB
LDS_BYTES = 160 * KB
QD = 8
NT = " nt"
SEQ = ["w0", "w1", "w2", "w3", "w4", "w5", "w6", "w7"]
PCOND = {"w6": 1, "w7": 2}
def need(hc): return hc + 1
UCOND = {0: 0, 1: 4, 2: 4, 3: 6, 4: 6, 5: 6, 6: 6, 7: 6}

def gen_k1(A, stamp=0, opt=None):
    opt = opt or {}
    sX, sK, sV, sWQ, sWO, sWS = 20, 24, 28, 32, 36, 40
    sWAVE, sB, sH = 44, 45, 46
    sKVOFF = 47
    sT0, sT1, sT2, sT3 = 48, 49, 50, 51
    sC, sTHR = 52, 53
    sXG = 54; sWQG = 55
    sTILE = 58; sSEEN = 59
    A.raw(".p2align 8\nattn_kernel:")
    A("s_cmp_ge_u32 s2, 256\ns_cbranch_scc1 K1_END")
    if stamp:
        for i in range(8): A(f"s_mov_b64 s[{64+2*i}:{65+2*i}], 0")
    stamp_at(A, stamp, 0)
    if stamp == 3: A("s_memtime s[66:67]\ns_waitcnt lgkmcnt(0)")
    A("s_load_dwordx16 s[4:19], s[0:1], 0")
    A("v_lshrrev_b32 v1, 6, v0\nv_and_b32 v0, 63, v0\ns_nop 0")
    A(f"v_readfirstlane_b32 s{sWAVE}, v1")
    if opt.get("map", 0) == 0:
        A(f"s_and_b32 s{sT0}, s2, 7\ns_lshr_b32 s{sT1}, s2, 3\ns_and_b32 s{sT2}, s{sT1}, 3")
        A(f"s_lshl_b32 s{sH}, s{sT0}, 2\ns_add_u32 s{sH}, s{sH}, s{sT2}\ns_lshr_b32 s{sB}, s{sT1}, 2")
    else:
        A(f"s_and_b32 s{sT0}, s2, 3\ns_lshl_b32 s{sH}, s{sT0}, 3\ns_lshr_b32 s{sT1}, s2, 3\ns_and_b32 s{sT2}, s{sT1}, 7\ns_add_u32 s{sH}, s{sH}, s{sT2}")
        A(f"s_and_b32 s{sB}, s2, 4\ns_lshr_b32 s{sT1}, s{sT1}, 3\ns_add_u32 s{sB}, s{sB}, s{sT1}")
    sGRP = 62
    G = opt.get("grp", 1)
    if G == 0: A(f"s_mov_b32 s{sGRP}, 0")
    elif G == 2: A(f"s_mov_b32 s{sGRP}, 1")
    else: A(f"s_add_u32 s{sGRP}, s{sB}, s{sH}\ns_and_b32 s{sGRP}, s{sGRP}, 1")
    A("v_lshrrev_b32 v1, 4, v0\nv_and_b32 v2, 15, v0")
    vFL = 18
    A(f"v_mov_b32 v{vFL}, {FL}")
    A(f"s_cmp_eq_u32 s{sWAVE}, 0\ns_cbranch_scc1 K1_LOADER")
    lab = [0]

    A(f"s_sub_u32 s{sWAVE}, s{sWAVE}, 1")
    vDX = 64
    A("v_xor_b32 v3, v2, v1")
    for n in range(4):
        A(f"v_xor_b32 v{vDX+n}, {4*n}, v3\nv_lshlrev_b32 v{vDX+n}, 4, v{vDX+n}\nv_lshl_add_u32 v{vDX+n}, v1, 10, v{vDX+n}")
    A(f"s_mul_i32 s{sXG}, s{sB}, 96\ns_lshl_b32 s{sT0}, s{sWAVE}, 5\ns_add_u32 s{sXG}, s{sXG}, s{sT0}\ns_lshl_b32 s{sXG}, s{sXG}, 10")
    A(f"s_lshl_b32 s56, s{sWAVE}, 13")
    A("s_waitcnt lgkmcnt(0)\ns_barrier")
    srd(A, sX, 4, 5, 8*96*512*2)
    A(f"s_cmp_eq_u32 s{sGRP}, 0\ns_cbranch_scc1 K1_QGO")
    A("K1_QW:")
    A(f"s_sleep 2\nds_read_b32 v58, v{vFL} offset:8\ns_waitcnt lgkmcnt(0)\nv_readfirstlane_b32 s{sT3}, v58")
    A(f"s_cmp_eq_u32 s{sT3}, 0\ns_cbranch_scc1 K1_QW")
    A("K1_QGO:")
    vtc = VmTrack(A)
    if opt.get("touch", 0):
        srd(A, sWQ, 10, 11, 4 << 20)
        A(f"s_lshr_b32 s57, s2, 3")
        A(f"s_cmp_eq_u32 s{sWAVE}, 2\ns_cbranch_scc1 K1_TW")
        A(f"s_mul_i32 s60, s57, 24576\ns_mul_i32 s61, s{sWAVE}, 12288\ns_add_u32 s60, s60, s61")
        A("v_lshlrev_b32 v70, 7, v0\nv_and_b32 v71, 31, v0\nv_lshlrev_b32 v71, 7, v71\nv_add_u32 v71, 8192, v71")
        A(f"buffer_load_dword v72, v70, s[{sX}:{sX+3}], s60 offen\nbuffer_load_dword v73, v71, s[{sX}:{sX+3}], s60 offen")
        A("s_branch K1_TD")
        A("K1_TW:")
        A(f"s_lshl_b32 s60, s57, 17\ns_and_b32 s61, s2, 7\ns_lshl_b32 s61, s61, 10\ns_add_u32 s60, s60, s61")
        A("v_lshrrev_b32 v70, 3, v0\nv_lshlrev_b32 v70, 13, v70\nv_and_b32 v71, 7, v0\nv_lshl_add_u32 v70, v71, 7, v70\nv_add_u32 v71, 0x10000, v70")
        A(f"buffer_load_dword v72, v70, s[{sWQ}:{sWQ+3}], s60 offen\nbuffer_load_dword v73, v71, s[{sWQ}:{sWQ+3}], s60 offen")
        A("K1_TD:")
        vtc.issue("t"); vtc.issue("t")
    def xops(j):
        ops = []
        for n in range(8):
            pre = f"s_add_u32 s57, s{sXG}, {j*256 + n*4096}\ns_add_u32 s60, s56, {XB[j%2] + n*1024}\ns_mov_b32 m0, s60\ns_nop 0\n"
            ops.append(pre + f"buffer_load_dwordx4 v{vDX+n%4}, s[{sX}:{sX+3}], s57 offen lds")
        return ops
    for j in range(2):
        for op in xops(j):
            A(op); vtc.issue(j)
    vKA = 20; vVA = 28
    vNMC, vL, vTS, vTMP, vTMP2, vAL = 48, 49, 50, 51, 52, 53
    vST = 54; vPG = 55; vPA = 56
    vF0 = 58
    vQ = 64; vO = 96
    vXA = [32, 40]
    vWA = [4, 8, 12]
    vS = [160, 176]
    vP = 192; vPK = 208; vKF = 216
    aVF = 0
    A(f"s_mov_b32 s{sC}, {hex(f32bits(SCALE_LOG2E))}\ns_mov_b32 s{sTHR}, {hex(f32bits(THRESH))}")
    A("v_and_b32 v3, 31, v0\nv_lshrrev_b32 v19, 5, v0")
    A("v_and_b32 v60, 15, v3\nv_xor_b32 v60, v60, v19\nv_lshlrev_b32 v60, 4, v60")
    A(f"v_lshl_add_u32 v{vKA}, v3, 8, v60")
    for s in range(1, 8):
        A(f"v_xor_b32 v{vKA+s}, {32*s}, v{vKA}")
    A(f"s_lshl_b32 s{sT0}, s{sWAVE}, 13\ns_add_u32 s{sT1}, s{sT0}, {XB[1]}\ns_add_u32 s{sT0}, s{sT0}, {XB[0]}")
    for s in range(8):
        A(f"v_add_u32 v{vXA[0]+s}, s{sT0}, v{vKA+s}\nv_add_u32 v{vXA[1]+s}, s{sT1}, v{vKA+s}")
    A("v_lshrrev_b32 v60, 2, v2")
    A("v_and_b32 v61, 1, v1\nv_lshlrev_b32 v61, 5, v61")
    A("v_and_b32 v62, 3, v2\nv_lshlrev_b32 v62, 3, v62")
    A("v_add_u32 v61, v61, v62")
    for T in range(4):
        A(f"v_xor_b32 v62, {T}, v60\nv_lshl_add_u32 v62, v62, 6, v61")
        A(f"v_lshl_add_u32 v63, v19, 2, v60\nv_lshl_add_u32 v{vVA+T}, v63, 8, v62")
        A(f"v_add_u32 v{vVA+T}, {LV}, v{vVA+T}")
        A(f"v_lshl_add_u32 v63, v19, 3, v60\nv_lshl_add_u32 v{vWA[0]+T}, v63, 8, v62")
        A(f"v_add_u32 v{vWA[1]+T}, {64*KB}, v{vWA[0]+T}\nv_add_u32 v{vWA[2]+T}, {128*KB}, v{vWA[0]+T}")
    A("v_lshrrev_b32 v62, 4, v3\nv_lshlrev_b32 v62, 17, v62\nv_and_b32 v63, 15, v3\nv_lshl_add_u32 v62, v63, 4, v62")
    A(f"v_lshl_add_u32 v{vST}, v19, 8, v62")
    A(f"s_lshl_b32 s{sT0}, s{sWAVE}, 2\ns_add_u32 s{sT0}, s{sT0}, {FL+16}\nv_mov_b32 v{vPA}, s{sT0}")
    A(f"s_mov_b32 s{sSEEN}, 0")
    srd(A, sWS, 18, 19, 256 << 20)

    def wait_flag_ops(off, val):
        lab[0] += 1
        L = f"K1_L{lab[0]}"
        return "\n".join([
            f"s_cmp_ge_u32 s{sSEEN}, {val}\ns_cbranch_scc1 {L}_OK",
            f"{L}:",
            f"ds_read_b32 v{vF0}, v{vFL} offset:{off}\ns_waitcnt lgkmcnt(0)\nv_readfirstlane_b32 s{sSEEN}, v{vF0}",
            f"s_cmp_ge_u32 s{sSEEN}, {val}\ns_cbranch_scc0 {L}",
            f"{L}_OK:"])

    AB = [vS[0], vS[1], vP]
    lops = []
    def L(op, tag):
        A(op); lops.append(tag)
    def lwait(tag):
        idx = max(i for i, t in enumerate(lops) if t == tag)
        A(f"s_waitcnt lgkmcnt({min(15, len(lops) - 1 - idx)})")
    def rd(g):
        hc, s4 = g // 4, g % 4
        base = AB[g % 3]
        o = []
        wb = WB[hc % 6][s4 // 2] + (s4 % 2) * 16 * 256
        reg = vWA[wb // (64*KB)]; off = wb % (64*KB)
        for T in range(4):
            for t in range(2):
                o.append(f"ds_read_b64_tr_b16 {vr(base+4*T+2*t,2)}, v{reg+T} offset:{off + 4*t*256}")
        return o
    aX = 32
    def xrd(j): return [f"ds_read_b128 a[{aX+32*j+4*s}:{aX+32*j+4*s+3}], v{vXA[j%2]+s}" for s in range(8)]
    stamp_at(A, stamp == 4, 1)
    vtc.wait(0)
    stamp_at(A, stamp == 4, 2)
    for op in xrd(0): A(op)
    vtc.wait(1)
    stamp_at(A, stamp == 4, 3)
    for op in xrd(1): A(op)
    A("s_waitcnt lgkmcnt(0)")
    for j in (2, 3):
        for op in xops(j):
            A(op); vtc.issue(j)
    stamp_at(A, stamp == 4, 4)
    A(wait_flag_ops(4, need(0)))
    stamp_at(A, stamp == 4, 5)
    stamp_at(A, stamp == 2, 1)
    xq = []
    for op in rd(0): L(op, 0)
    for op in rd(1): L(op, 1)
    for g in range(32):
        lwait(g)
        if g % 4 == 3:
            A(f"v_mov_b32 v{vPG}, {g//4+1}")
            L(f"ds_write_b32 v{vPA}, v{vPG}", "p")
        if g == 9:
            vtc.wait(3); xq += xrd(2) + xrd(3)
        base = AB[g % 3]
        nx = rd(g + 2) if g + 2 < 32 else []
        for T in range(4):
            c = "0" if g == 0 else vr(vO+16*T,16)
            A(f"v_mfma_f32_32x32x16_bf16 {vr(vO+16*T,16)}, {vr(base+4*T,4)}, a[{aX+4*g}:{aX+4*g+3}], {c}")
            if T == 0 and nx and (g + 2) % 4 == 0:
                A(wait_flag_ops(4, need((g + 2) // 4)))
            for op in nx[2*T:2*T+2]: L(op, g + 2)
            if xq: L(xq.pop(0), "x")
        if g in (7, 15, 23): stamp_at(A, stamp == 2, 2 + g // 8)
    stamp_at(A, stamp == 2, 5)
    stamp_at(A, stamp == 1, 1)
    A(f"s_mov_b32 s{sSEEN}, 0\ns_mov_b32 s{sTILE}, 1")
    def wait_landed_ops():
        if opt.get("nowait", 0): return f"s_cmp_ge_u32 s{sSEEN}, 0\ns_add_u32 s{sTILE}, s{sTILE}, 1"
        return wait_flag_ops(0, f"s{sTILE}") + f"\ns_add_u32 s{sTILE}, s{sTILE}, 1"
    def kreads(slot):
        return [f"ds_read_b128 {vr(vKF+4*s,4)}, v{vKA+s} offset:{LK+slot*8192}" for s in range(8)]
    A(wait_landed_ops())
    for op in kreads(0): A(op)
    A("s_nop 7")
    for s in range(8):
        T, hh = s // 2, s % 2
        src = vO + 16 * T + 8 * hh
        d = vQ + 4 * s
        for j in range(4):
            A(f"v_cvt_pk_bf16_f32 v{d+j}, v{src+2*j}, v{src+2*j+1}")
        A("s_nop 1")
        A(f"v_permlane32_swap_b32 v{d}, v{d+2}")
        A(f"v_permlane32_swap_b32 v{d+1}, v{d+3}")

    def consumed():
        A(f"v_add_u32 v{vPG}, 1, v{vPG}\nds_write_b32 v{vPA}, v{vPG}")
    NE1 = opt.get("ne1", 10)
    def fma_ops(Sc): return [f"v_fma_f32 v{vP+r}, v{Sc+r}, s{sC}, v{vNMC}" for r in range(16)]
    def exp_ops(): return [f"v_exp_f32 v{vP+r}, v{vP+r}" for r in range(16)]
    def sum_ops():
        ops = [f"v_add_f32 v{vTS}, v{vP}, v{vP+1}", f"v_add_f32 v{vTMP}, v{vP+2}, v{vP+3}"]
        for r in range(4, 16, 2):
            ops += [f"v_add_f32 v{vTS}, v{vTS}, v{vP+r}", f"v_add_f32 v{vTMP}, v{vTMP}, v{vP+r+1}"]
        ops.append(f"v_add_f32 v{vTS}, v{vTS}, v{vTMP}")
        return ops
    def part1(Sc):
        fm, ex = fma_ops(Sc), exp_ops()[:NE1]
        seq = fm[:4]; rest = fm[4:]
        for i in range(max(len(rest), len(ex))):
            if i < len(ex): seq.append(ex[i])
            if i < len(rest): seq.append(rest[i])
        return seq
    def cost(op):
        if op.startswith("v_exp"): return 8
        if op.startswith("ds_"): return opt.get("dscost", 8)
        return 4 * (op.count("\n") + 1) if not op.startswith("s_cmp") else 12
    def interleave(mfmas, fillers):
        tot = sum(cost(o) for o in fillers)
        n = len(mfmas)
        if n == 0:
            for op in fillers: A(op)
            return
        acc = 0; k = 0
        for i, m in enumerate(mfmas):
            A(m)
            tgt = tot * (i + 1) / n
            while k < len(fillers) and (acc + cost(fillers[k]) / 2 <= tgt or i == n - 1):
                A(fillers[k]); acc += cost(fillers[k]); k += 1
    def qk(Sn):
        return [f"v_mfma_f32_32x32x16_bf16 {vr(Sn,16)}, {vr(vKF+4*s,4)}, {vr(vQ+4*s,4)}, {'0' if s == 0 else vr(Sn,16)}" for s in range(8)]

    A("s_waitcnt lgkmcnt(0)")
    z = [f"v_mov_b32 v{vO+r}, 0" for r in range(64)] + [f"v_mov_b32 v{vNMC}, 0x7f800000", f"v_mov_b32 v{vL}, 0"]
    interleave(qk(vS[0]), z)
    consumed()
    A(wait_landed_ops())
    for op in kreads(1): A(op)
    A("s_nop 7")
    for op in part1(vS[0]): A(op)

    def iteration(tag, k, last):
        par = k % 2
        Sc, Sn = vS[par], vS[par ^ 1]
        vslot = (k + 1) % 8
        A("s_waitcnt lgkmcnt(0)")
        vrd = [f"ds_read_b64_tr_b16 a[{aVF+16*u+4*T+2*t}:{aVF+16*u+4*T+2*t+1}], v{vVA+T} offset:{vslot*8192+(16*u+8*t)*256}"
               for u in range(2) for T in range(4) for t in range(2)]
        ex = exp_ops()[NE1:]
        sm = sum_ops()
        f = []
        rest = ex + ["s_nop 0"] + sm
        ri = 0
        for i in range(16):
            f.append(vrd[i])
            if i % 2 == 1:
                take = 1 if ri < len(ex) else 3
                f += rest[ri:ri+take]; ri += take
        f += rest[ri:]
        if opt.get("nowait", 0): f.append(f"v_cmp_nge_f32 vcc, s{sTHR}, v{vTS}\ns_nop 0\nK1_CK{tag}:")
        else: f.append(f"v_cmp_nge_f32 vcc, s{sTHR}, v{vTS}\ns_cbranch_vccnz K1_RARE{tag}\nK1_CK{tag}:")
        f.append(f"v_add_f32 v{vL}, v{vL}, v{vTS}")
        f += [f"v_cvt_pk_bf16_f32 v{vPK+j}, v{vP+2*j}, v{vP+2*j+1}" for j in range(8)]
        interleave([] if last else qk(Sn), f)
        A("s_waitcnt lgkmcnt(0)")
        if not last: consumed()
        else: A("s_nop 1")
        pv = [f"v_mfma_f32_32x32x16_bf16 {vr(vO+16*T,16)}, a[{aVF+16*u+4*T}:{aVF+16*u+4*T+3}], {vr(vPK+4*u,4)}, {vr(vO+16*T,16)}"
              for u in range(2) for T in range(4)]
        if last:
            for m in pv: A(m)
            return
        p1 = part1(Sn)
        h = opt.get("pollpos", 10)
        kr = kreads((k + 2) % 8)
        tail = []
        r2 = p1[h:]
        for i in range(8):
            tail.append(kr[i])
            if i % 2 == 1: tail += r2[:2]; r2 = r2[2:]
        tail += r2
        f = ["s_nop 3"] + p1[:h] + [wait_landed_ops()] + tail
        interleave(pv, f)

    def rare(tag, par):
        Sc = vS[par]
        A(f"K1_RARE{tag}:")
        A(f"v_max3_f32 v{vTMP}, v{Sc}, v{Sc+1}, v{Sc+2}")
        for r in range(3, 15, 2):
            A(f"v_max3_f32 v{vTMP}, v{vTMP}, v{Sc+r}, v{Sc+r+1}")
        A(f"v_max_f32 v{vTMP}, v{vTMP}, v{Sc+15}")
        A(f"v_mov_b32 v{vTMP2}, v{vTMP}\ns_nop 1\nv_permlane32_swap_b32 v{vTMP}, v{vTMP2}\nv_max_f32 v{vTMP}, v{vTMP}, v{vTMP2}")
        A(f"v_mul_f32 v{vTMP}, s{sC}, v{vTMP}")
        A(f"v_sub_f32 v{vTMP}, 0, v{vTMP}\nv_min_f32 v{vTMP}, v{vNMC}, v{vTMP}")
        A(f"v_sub_f32 v{vAL}, v{vTMP}, v{vNMC}\nv_exp_f32 v{vAL}, v{vAL}\nv_mov_b32 v{vNMC}, v{vTMP}")
        A(f"v_mul_f32 v{vL}, v{vL}, v{vAL}")
        for r in range(64):
            A(f"v_mul_f32 v{vO+r}, v{vO+r}, v{vAL}")
        for op in fma_ops(Sc) + exp_ops(): A(op)
        A("s_nop 0")
        for op in sum_ops(): A(op)

    A("K1_LOOP:")
    for k in range(8):
        if k == 7:
            A(f"s_cmp_eq_u32 s{sTILE}, 34\ns_cbranch_scc1 K1_LAST")
        iteration(k, k, False)
    if stamp == 1:
        for idx, val in ((2, 11), (3, 19), (4, 27)):
            A(f"s_cmp_eq_u32 s{sTILE}, {val}\ns_cbranch_scc0 K1_NS{idx}")
            stamp_at(A, 1, idx)
            A(f"K1_NS{idx}:")
    A("s_branch K1_LOOP")
    A("K1_LAST:")
    iteration(8, 7, True)
    stamp_at(A, stamp in (1, 3), 6)
    if stamp == 3: A("s_memtime s[68:69]\ns_waitcnt lgkmcnt(0)")
    A(f"v_mov_b32 v{vTMP}, v{vL}\ns_nop 1\nv_permlane32_swap_b32 v{vL}, v{vTMP}\nv_add_f32 v{vL}, v{vL}, v{vTMP}")
    A(f"v_rcp_f32 v{vAL}, v{vL}")
    A(f"s_mul_i32 s{sT0}, s{sB}, 6\ns_lshl_b32 s{sT1}, s{sWAVE}, 1\ns_add_u32 s{sT0}, s{sT0}, s{sT1}\ns_lshl_b32 s{sT0}, s{sT0}, 7")
    A(f"s_lshl_b32 s{sT1}, s{sH}, 2\ns_add_u32 s{sT0}, s{sT0}, s{sT1}\ns_lshl_b32 s{sT0}, s{sT0}, 10")
    A("s_nop 7")
    for T in range(4):
        for ip in range(2):
            src = vO + 16 * T + 8 * ip
            d = vKF + 4 * (2 * T + ip)
            for j in range(8):
                A(f"v_mul_f32 v{src+j}, v{src+j}, v{vAL}")
            for j in range(4):
                A(f"v_cvt_pk_bf16_f32 v{d+j}, v{src+2*j}, v{src+2*j+1}")
            A(f"buffer_store_dwordx4 {vr(d,4)}, v{vST}, s[{sWS}:{sWS+3}], s{sT0} offen offset:{T*1024+ip*512}")
    if stamp: A(f"s_add_u32 s{sWAVE}, s{sWAVE}, 1")
    A("s_branch K1_FIN")
    for tag in range(9):
        par = tag % 2 if tag < 8 else 1
        A(f"K1_RARE{tag}:")
        A(f"s_call_b64 s[{sT0}:{sT1}], K1_RAREP{par}")
        A(f"s_branch K1_CK{tag}")
    for par in range(2):
        rare(f"P{par}", par)
        A(f"s_setpc_b64 s[{sT0}:{sT1}]")

    A("K1_LOADER:")
    vDKc = 4; vDK = 8; vDX = 12; vDV, vDW = 16, 17
    A("v_mov_b32 v20, 0\nv_mov_b32 v21, 0\nv_mov_b32 v22, 0\nv_mov_b32 v23, 0")
    A(f"ds_write_b128 v{vFL}, v[20:23]\nds_write_b128 v{vFL}, v[20:23] offset:16")
    A("v_xor_b32 v3, v2, v1")
    for n in range(4):
        A(f"v_xor_b32 v{vDKc+n}, {4*n}, v3\nv_lshlrev_b32 v{vDKc+n}, 4, v{vDKc+n}")
        A(f"v_lshl_add_u32 v{vDX+n}, v1, 10, v{vDKc+n}\nv_lshl_add_u32 v{vDK+n}, v1, 8, v{vDKc+n}")
    A("v_lshlrev_b32 v3, 2, v1\nv_xor_b32 v3, v3, v2\nv_lshlrev_b32 v3, 4, v3")
    A(f"v_lshl_add_u32 v{vDV}, v1, 8, v3\nv_lshl_add_u32 v{vDW}, v1, 13, v3")
    A(f"s_lshl_b32 s{sKVOFF}, s{sB}, 5\ns_add_u32 s{sKVOFF}, s{sKVOFF}, s{sH}\ns_lshl_b32 s{sKVOFF}, s{sKVOFF}, 18")
    A(f"s_mul_i32 s{sXG}, s{sB}, {96*1024}\ns_lshl_b32 s{sWQG}, s{sH}, 8")
    A(f"s_mov_b32 s{sSEEN}, 0")
    A("s_waitcnt lgkmcnt(0)")
    srd(A, sWQ, 10, 11, 4 << 20)
    vt = VmTrack(A)
    vLW = 24; vLD = 26; vLF = 28
    def pub(off, val):
        A(f"v_mov_b32 v{vLD}, {val}\nds_write_b32 v{vFL}, v{vLD} offset:{off}")
    def wait_prog(val):
        if val <= 0: return
        lab[0] += 1
        Lb = f"K1_P{lab[0]}"
        A(f"s_cmp_ge_u32 s{sSEEN}, {val}\ns_cbranch_scc1 {Lb}_OK")
        A(f"{Lb}:")
        A(f"ds_read_b96 {vr(vLF,3)}, v{vFL} offset:16\ns_waitcnt lgkmcnt(0)")
        A(f"v_min3_u32 v{vLF}, v{vLF}, v{vLF+1}, v{vLF+2}\ns_nop 0\nv_readfirstlane_b32 s{sSEEN}, v{vLF}")
        A(f"s_cmp_ge_u32 s{sSEEN}, {val}\ns_cbranch_scc0 {Lb}")
        A(f"{Lb}_OK:")
    def piece(name):
        j = int(name[1])
        if name[0] == "x":
            A(f"s_add_u32 s{sT1}, s{sXG}, {j*256}")
            for n in range(24):
                A(f"s_mov_b32 m0, {XB[j%2] + n*1024}")
                if n: A(f"s_add_u32 s{sT1}, s{sT1}, 4096")
                else: A("s_nop 0")
                A(f"buffer_load_dwordx4 v{vDX+n%4}, s[{sX}:{sX+3}], s{sT1} offen lds")
                vt.issue(name)
        else:
            A(f"s_add_u32 s{sT1}, s{sWQG}, {j*64*8192}")
            for n in range(16):
                A(f"s_mov_b32 m0, {WB[j%6][n//8] + (n%8)*1024}")
                if n: A(f"s_add_u32 s{sT1}, s{sT1}, {4*8192}")
                else: A("s_nop 0")
                A(f"buffer_load_dwordx4 v{vDW}, s[{sWQ}:{sWQ+3}], s{sT1} offen lds")
                vt.issue(name)
    qpub = [0]
    def last_idx(tag): return max(i for i, t in enumerate(vt.ops) if t == tag)
    def pub_q():
        k = qpub[0]
        while k < len(SEQ) and SEQ[k] in vt.ops and last_idx(SEQ[k]) <= vt.done: k += 1
        if k > qpub[0]:
            pub(4, k); qpub[0] = k
    def settle(n):
        if len(vt.ops) - 1 - vt.done > n:
            A(f"s_waitcnt vmcnt({n})"); vt.done = len(vt.ops) - 1 - n
        pub_q()
    def parts(u):
        p = []
        if u <= 31: p.append((sK, LK, True, u))
        if u >= 1: p.append((sV, LV, False, u - 1))
        return p
    def dma_unit(u):
        slot = u % 8
        for (srdb, lbase, isk, tile) in parts(u):
            for g in range(2):
                A(f"s_mov_b32 m0, {lbase + slot*8192 + g*4096}\ns_add_u32 s{sT2}, s{sKVOFF}, {tile*8192 + g*4096}")
                for n in range(4):
                    vo = vDK + n if isk else vDV
                    A(f"buffer_load_dwordx4 v{vo}, s[{srdb}:{srdb+3}], s{sT2} offen offset:{n*1024}{NT} lds")
                    vt.issue(("u", u))
    QN = opt.get("qn", 40)
    A("s_barrier")
    srd(A, sK, 6, 7, 64 << 20)
    srd(A, sV, 8, 9, 64 << 20)
    A(f"v_lshlrev_b32 v{vLW}, 4, v0\nv_add_u32 v{vLW+1}, {LV}, v{vLW}")
    def rbuf(u, i):
        f = (u - 1) % 7
        if f < 3:
            b = 32 + f * 64 + 4 * i
            return f"v[{b}:{b+3}]"
        b = (f - 3) * 64 + 4 * i
        return f"a[{b}:{b+3}]"
    def reg_unit(u, pace=None):
        for pi, (srdb, lbase, isk, tile) in enumerate(parts(u)):
            for g in range(2):
                if pace is not None: settle(pace)
                A(f"s_add_u32 s{sT2}, s{sKVOFF}, {tile*8192 + g*4096}")
                for n in range(4):
                    vo = vDK + n if isk else vDV
                    A(f"buffer_load_dwordx4 {rbuf(u, pi*8+g*4+n)}, v{vo}, s[{srdb}:{srdb+3}], s{sT2} offen offset:{n*1024}{NT}")
                    vt.issue(("u", u))
    def dump_unit(u):
        slot = u % 8
        for pi in range(2):
            for i in range(8):
                A(f"ds_write_b128 v{vLW+pi}, {rbuf(u, pi*8+i)} offset:{slot*8192 + i*1024}")
        A("s_waitcnt lgkmcnt(0)")
    def qblock():
        for i, p in enumerate(SEQ):
            if p in PCOND:
                vt.wait(SEQ[need(PCOND[p]) - 1]); pub_q()
                wait_prog(PCOND[p])
            piece(p)
            if i >= 2: settle(QN)
    def kvpre(pace):
        dma_unit(0)
        for u in range(1, 8): reg_unit(u, pace)
    PB = opt.get("paceb", 44); PA = opt.get("pacea", 44)
    A(f"s_cmp_eq_u32 s{sGRP}, 1\ns_cbranch_scc1 K1_LB")
    qblock()
    stamp_at(A, stamp in (1, 6), 1)
    kvpre(PA)
    assert qpub[0] == len(SEQ)
    vt.wait(("u", 0)); pub(0, 1)
    A("s_branch K1_LJ")
    A("K1_LB:")
    vt.ops = []; vt.done = -1; qpub[0] = 0
    kvpre(PB)
    pub(8, 1)
    stamp_at(A, stamp == 1, 1)
    qblock()
    pub(0, 1)
    for k in range(qpub[0] + 1, len(SEQ) + 1):
        vt.wait(SEQ[k - 1]); pub_q()
    A("K1_LJ:")
    vt.ops = [("u", u) for u in range(1, 8) for _ in range(16)]; vt.done = -1; qpub[0] = len(SEQ)
    srd(A, sWO, 12, 13, 4 << 20)
    srd(A, sWS, 18, 19, 256 << 20)
    vWOD = 20; vWOT = 21
    A(f"v_lshrrev_b32 v3, 5, v0\nv_and_b32 v19, 31, v0\nv_lshlrev_b32 v19, 4, v19\nv_lshl_add_u32 v{vWOD}, v3, 10, v19")
    A("v_lshrrev_b32 v3, 1, v1\nv_lshlrev_b32 v3, 4, v3\nv_and_b32 v19, 1, v1\nv_lshl_add_u32 v3, v19, 2, v3")
    A("v_lshrrev_b32 v19, 2, v2\nv_add_u32 v3, v3, v19\nv_and_b32 v19, 3, v2\nv_lshlrev_b32 v19, 3, v19")
    A(f"v_lshl_add_u32 v{vWOT}, v3, 9, v19\nv_add_u32 v{vWOT}, {LX}, v{vWOT}")
    W = opt.get("win", 3)
    for u in range(1, 33):
        if u <= 14:
            wait_prog(UCOND[u] if u < 8 else QD + u - 7)
            vt.wait(("u", u))
            dump_unit(u)
            pub(0, u + 1)
            if u <= 7: reg_unit(u + 7)
        else:
            vt.wait(("u", u))
            pub(0, u + 1)
        if u in (1, 8, 15, 20, 26): stamp_at(A, stamp == 6, {1: 2, 8: 3, 15: 4, 20: 5, 26: 6}[u])
        nu = u + W
        if 15 <= nu <= 32:
            wait_prog(QD + nu - 7)
            dma_unit(nu)
        if u == 9 and not opt.get('nowo', 0):
            A(f"s_lshr_b32 s{sT0}, s2, 1\ns_lshl_b32 s{sT0}, s{sT0}, 15\ns_and_b32 s{sT1}, s2, 1\ns_lshl_b32 s{sT1}, s{sT1}, 9\ns_add_u32 s{sT0}, s{sT0}, s{sT1}")
            for n in range(16):
                A(f"s_mov_b32 m0, {LX + n*1024}\ns_nop 0")
                A(f"buffer_load_dwordx4 v{vWOD}, s[{sWO}:{sWO+3}], s{sT0} offen lds")
                A(f"s_add_u32 s{sT0}, s{sT0}, 2048")
                vt.issue(("wo", 0))
        if u == 16 and not opt.get('nowo', 0):
            vt.wait(("wo", 0))
            for ct in range(16):
                for t in range(2):
                    A(f"ds_read_b64_tr_b16 {vr(32+4*ct+2*t,2)}, v{vWOT} offset:{ct*32 + t*8*512}")
            A("s_waitcnt lgkmcnt(0)")
            A(f"s_lshl_b32 s{sT0}, s2, 14\ns_add_u32 s{sT0}, s{sT0}, {WS_WO}")
            for ct in range(16):
                if ct % 4 == 0 and ct: A(f"s_add_u32 s{sT0}, s{sT0}, 4096")
                A(f"buffer_store_dwordx4 {vr(32+4*ct,4)}, v{vLW}, s[{sWS}:{sWS+3}], s{sT0} offen offset:{(ct%4)*1024}")
                vt.issue(("wost", 0))
    stamp_at(A, stamp == 1, 5)
    A("K1_FIN:")
    if stamp:
        stamp_store(A, sWS, sT0, f"s_lshl_b32 s{sT0}, s2, 2\ns_add_u32 s{sT0}, s{sT0}, s{sWAVE}", WS_STAMP)
    A("K1_END:\ns_endpgm")

def main(stamp=0, opt=None):
    A = Asm()
    A.raw(f"; @launch kernel=attn_kernel grid=(256,1,1) block=(256,1,1) lds={LDS_BYTES}")
    A.raw(f"; @launch kernel=oproj_kernel grid=(256,1,1) block=(512,1,1) lds={8*6144}")
    A.raw('.amdgcn_target "amdgcn-amd-amdhsa--gfx950"\n.text')
    A.raw(".globl attn_kernel\n.type attn_kernel,@function\n.globl oproj_kernel\n.type oproj_kernel,@function")
    gen_k1(A, stamp, opt)
    gen_k2(A, stamp)
    A.raw('.section .rodata,"a"')
    A.raw(kd("attn_kernel", 512, 256))
    A.raw(kd("oproj_kernel", 252, 228))
    return A.text()

if __name__ == "__main__":
    stamp = 1 if "--stamp" in sys.argv else (2 if "--stamp2" in sys.argv else (3 if "--stamp3" in sys.argv else (4 if "--stamp4" in sys.argv else (5 if "--stamp5" in sys.argv else (6 if "--stamp6" in sys.argv else 0)))))
    opt = {}
    for a in sys.argv[1:]:
        if a.startswith("--") and "=" in a:
            k, v = a[2:].split("="); opt[k] = int(v)
    out = [a for a in sys.argv[1:] if not a.startswith("--")][0]
    open(out, "w").write(main(stamp, opt))
```

```python
import sys, struct
from gen1 import Asm, vr, f32bits, srd, VmTrack, stamp_at, stamp_store, gen_k2, kd, WS_O, WS_WO, WS_STAMP, SCALE_LOG2E, THRESH

KB = 1024
LK = 0
LV = 64 * KB
LX = 128 * KB
WB = [(128*KB, 136*KB), (144*KB, 64*KB), (8*KB, 16*KB), (72*KB, 80*KB), (24*KB, 32*KB), (88*KB, 96*KB)]
XB = [40 * KB, 104 * KB]
FL = 152 * KB
LDS_BYTES = 160 * KB
WS_MB = 7 << 20
QD = 8
NT = " nt"
SEQ = ["w0", "w1", "w2", "w3", "w4", "w5", "w6", "w7"]
PCOND = {"w6": 1, "w7": 2}
def need(hc): return hc + 1
UCOND = {0: 0, 1: 4, 2: 4, 3: 6, 4: 6, 5: 6, 6: 6, 7: 6}

def gen_k1(A, stamp=0, opt=None):
    opt = opt or {}
    sX, sK, sV, sWQ, sWO, sWS = 20, 24, 28, 32, 36, 40
    sWAVE, sB, sH = 44, 45, 46
    sKVOFF = 47
    sT0, sT1, sT2, sT3 = 48, 49, 50, 51
    sC, sTHR = 52, 53
    sXG = 54; sWQG = 55
    sTILE = 58; sSEEN = 59
    A.raw(".p2align 8\nstandalone__gqa_block_cached__near_ridge_kernel:")
    A("s_cmp_ge_u32 s2, 256\ns_cbranch_scc1 K1_END")
    if stamp:
        for i in range(8): A(f"s_mov_b64 s[{64+2*i}:{65+2*i}], 0")
    stamp_at(A, stamp, 0)
    if stamp == 3: A("s_memtime s[66:67]\ns_waitcnt lgkmcnt(0)")
    A("s_load_dwordx16 s[4:19], s[0:1], 0")
    A("v_lshrrev_b32 v1, 6, v0\nv_and_b32 v0, 63, v0\ns_nop 0")
    A(f"v_readfirstlane_b32 s{sWAVE}, v1")
    if opt.get("map", 0) == 0:
        A(f"s_and_b32 s{sT0}, s2, 7\ns_lshr_b32 s{sT1}, s2, 3\ns_and_b32 s{sT2}, s{sT1}, 3")
        A(f"s_lshl_b32 s{sH}, s{sT0}, 2\ns_add_u32 s{sH}, s{sH}, s{sT2}\ns_lshr_b32 s{sB}, s{sT1}, 2")
    else:
        A(f"s_and_b32 s{sT0}, s2, 3\ns_lshl_b32 s{sH}, s{sT0}, 3\ns_lshr_b32 s{sT1}, s2, 3\ns_and_b32 s{sT2}, s{sT1}, 7\ns_add_u32 s{sH}, s{sH}, s{sT2}")
        A(f"s_and_b32 s{sB}, s2, 4\ns_lshr_b32 s{sT1}, s{sT1}, 3\ns_add_u32 s{sB}, s{sB}, s{sT1}")
    sGRP = 62
    G = opt.get("grp", 1)
    if G == 0: A(f"s_mov_b32 s{sGRP}, 0")
    elif G == 2: A(f"s_mov_b32 s{sGRP}, 1")
    else: A(f"s_add_u32 s{sGRP}, s{sB}, s{sH}\ns_and_b32 s{sGRP}, s{sGRP}, 1")
    A("v_lshrrev_b32 v1, 4, v0\nv_and_b32 v2, 15, v0")
    vFL = 18
    A(f"v_mov_b32 v{vFL}, {FL}")
    A(f"s_cmp_eq_u32 s{sWAVE}, 0\ns_cbranch_scc1 K1_LOADER")
    lab = [0]

    A(f"s_sub_u32 s{sWAVE}, s{sWAVE}, 1")
    vDX = 64
    A("v_xor_b32 v3, v2, v1")
    for n in range(4):
        A(f"v_xor_b32 v{vDX+n}, {4*n}, v3\nv_lshlrev_b32 v{vDX+n}, 4, v{vDX+n}\nv_lshl_add_u32 v{vDX+n}, v1, 10, v{vDX+n}")
    A(f"s_mul_i32 s{sXG}, s{sB}, 96\ns_lshl_b32 s{sT0}, s{sWAVE}, 5\ns_add_u32 s{sXG}, s{sXG}, s{sT0}\ns_lshl_b32 s{sXG}, s{sXG}, 10")
    A(f"s_lshl_b32 s56, s{sWAVE}, 13")
    A("s_waitcnt lgkmcnt(0)\ns_barrier")
    srd(A, sX, 4, 5, 8*96*512*2)
    A(f"s_cmp_eq_u32 s{sGRP}, 0\ns_cbranch_scc1 K1_QGO")
    A("K1_QW:")
    A(f"s_sleep 2\nds_read_b32 v58, v{vFL} offset:8\ns_waitcnt lgkmcnt(0)\nv_readfirstlane_b32 s{sT3}, v58")
    A(f"s_cmp_eq_u32 s{sT3}, 0\ns_cbranch_scc1 K1_QW")
    A("K1_QGO:")
    vtc = VmTrack(A)
    srd(A, sWS, 18, 19, 256 << 20)
    srd(A, 24, 16, 17, 256)
    A(f"v_and_b32 v70, 31, v0\nv_lshlrev_b32 v70, 2, v70\nv_mov_b32 v71, 0\ns_lshl_b32 s57, s2, 7\ns_add_u32 s57, s57, {WS_MB}")
    A(f"s_cmp_eq_u32 s{sWAVE}, 0\ns_cbranch_scc0 K1_NOCLR")
    A(f"buffer_store_dword v71, v70, s[{sWS}:{sWS+3}], s57 offen sc1")
    A("K1_NOCLR:")
    if opt.get("touch", 0):
        srd(A, sWQ, 10, 11, 4 << 20)
        A(f"s_lshr_b32 s57, s2, 3")
        A(f"s_cmp_eq_u32 s{sWAVE}, 2\ns_cbranch_scc1 K1_TW")
        A(f"s_mul_i32 s60, s57, 24576\ns_mul_i32 s61, s{sWAVE}, 12288\ns_add_u32 s60, s60, s61")
        A("v_lshlrev_b32 v70, 7, v0\nv_and_b32 v71, 31, v0\nv_lshlrev_b32 v71, 7, v71\nv_add_u32 v71, 8192, v71")
        A(f"buffer_load_dword v72, v70, s[{sX}:{sX+3}], s60 offen\nbuffer_load_dword v73, v71, s[{sX}:{sX+3}], s60 offen")
        A("s_branch K1_TD")
        A("K1_TW:")
        A(f"s_lshl_b32 s60, s57, 17\ns_and_b32 s61, s2, 7\ns_lshl_b32 s61, s61, 10\ns_add_u32 s60, s60, s61")
        A("v_lshrrev_b32 v70, 3, v0\nv_lshlrev_b32 v70, 13, v70\nv_and_b32 v71, 7, v0\nv_lshl_add_u32 v70, v71, 7, v70\nv_add_u32 v71, 0x10000, v70")
        A(f"buffer_load_dword v72, v70, s[{sWQ}:{sWQ+3}], s60 offen\nbuffer_load_dword v73, v71, s[{sWQ}:{sWQ+3}], s60 offen")
        A("K1_TD:")
        vtc.issue("t"); vtc.issue("t")
    def xops(j):
        ops = []
        for n in range(8):
            pre = f"s_add_u32 s57, s{sXG}, {j*256 + n*4096}\ns_add_u32 s60, s56, {XB[j%2] + n*1024}\ns_mov_b32 m0, s60\ns_nop 0\n"
            ops.append(pre + f"buffer_load_dwordx4 v{vDX+n%4}, s[{sX}:{sX+3}], s57 offen lds")
        return ops
    for j in range(2):
        for op in xops(j):
            A(op); vtc.issue(j)
    vKA = 20; vVA = 28
    vNMC, vL, vTS, vTMP, vTMP2, vAL = 48, 49, 50, 51, 52, 53
    vST = 54; vPG = 55; vPA = 56
    vF0 = 58
    vQ = 64; vO = 96
    vXA = [32, 40]
    vWA = [4, 8, 12]
    vS = [160, 176]
    vP = 192; vPK = 208; vKF = 216
    aVF = 0
    A(f"s_mov_b32 s{sC}, {hex(f32bits(SCALE_LOG2E))}\ns_mov_b32 s{sTHR}, {hex(f32bits(THRESH))}")
    A("v_and_b32 v3, 31, v0\nv_lshrrev_b32 v19, 5, v0")
    A("v_and_b32 v60, 15, v3\nv_xor_b32 v60, v60, v19\nv_lshlrev_b32 v60, 4, v60")
    A(f"v_lshl_add_u32 v{vKA}, v3, 8, v60")
    for s in range(1, 8):
        A(f"v_xor_b32 v{vKA+s}, {32*s}, v{vKA}")
    A(f"s_lshl_b32 s{sT0}, s{sWAVE}, 13\ns_add_u32 s{sT1}, s{sT0}, {XB[1]}\ns_add_u32 s{sT0}, s{sT0}, {XB[0]}")
    for s in range(8):
        A(f"v_add_u32 v{vXA[0]+s}, s{sT0}, v{vKA+s}\nv_add_u32 v{vXA[1]+s}, s{sT1}, v{vKA+s}")
    A("v_lshrrev_b32 v60, 2, v2")
    A("v_and_b32 v61, 1, v1\nv_lshlrev_b32 v61, 5, v61")
    A("v_and_b32 v62, 3, v2\nv_lshlrev_b32 v62, 3, v62")
    A("v_add_u32 v61, v61, v62")
    for T in range(4):
        A(f"v_xor_b32 v62, {T}, v60\nv_lshl_add_u32 v62, v62, 6, v61")
        A(f"v_lshl_add_u32 v63, v19, 2, v60\nv_lshl_add_u32 v{vVA+T}, v63, 8, v62")
        A(f"v_add_u32 v{vVA+T}, {LV}, v{vVA+T}")
        A(f"v_lshl_add_u32 v63, v19, 3, v60\nv_lshl_add_u32 v{vWA[0]+T}, v63, 8, v62")
        A(f"v_add_u32 v{vWA[1]+T}, {64*KB}, v{vWA[0]+T}\nv_add_u32 v{vWA[2]+T}, {128*KB}, v{vWA[0]+T}")
    A("v_lshrrev_b32 v62, 4, v3\nv_lshlrev_b32 v62, 17, v62\nv_and_b32 v63, 15, v3\nv_lshl_add_u32 v62, v63, 4, v62")
    A(f"v_lshl_add_u32 v{vST}, v19, 8, v62")
    A(f"s_lshl_b32 s{sT0}, s{sWAVE}, 2\ns_add_u32 s{sT0}, s{sT0}, {FL+16}\nv_mov_b32 v{vPA}, s{sT0}")
    A(f"s_mov_b32 s{sSEEN}, 0")
    srd(A, sWS, 18, 19, 256 << 20)

    def wait_flag_ops(off, val):
        lab[0] += 1
        L = f"K1_L{lab[0]}"
        return "\n".join([
            f"s_cmp_ge_u32 s{sSEEN}, {val}\ns_cbranch_scc1 {L}_OK",
            f"{L}:",
            f"ds_read_b32 v{vF0}, v{vFL} offset:{off}\ns_waitcnt lgkmcnt(0)\nv_readfirstlane_b32 s{sSEEN}, v{vF0}",
            f"s_cmp_ge_u32 s{sSEEN}, {val}\ns_cbranch_scc0 {L}",
            f"{L}_OK:"])

    AB = [vS[0], vS[1], vP]
    lops = []
    def L(op, tag):
        A(op); lops.append(tag)
    def lwait(tag):
        idx = max(i for i, t in enumerate(lops) if t == tag)
        A(f"s_waitcnt lgkmcnt({min(15, len(lops) - 1 - idx)})")
    def rd(g):
        hc, s4 = g // 4, g % 4
        base = AB[g % 3]
        o = []
        wb = WB[hc % 6][s4 // 2] + (s4 % 2) * 16 * 256
        reg = vWA[wb // (64*KB)]; off = wb % (64*KB)
        for T in range(4):
            for t in range(2):
                o.append(f"ds_read_b64_tr_b16 {vr(base+4*T+2*t,2)}, v{reg+T} offset:{off + 4*t*256}")
        return o
    aX = 32
    def xrd(j): return [f"ds_read_b128 a[{aX+32*j+4*s}:{aX+32*j+4*s+3}], v{vXA[j%2]+s}" for s in range(8)]
    stamp_at(A, stamp == 4, 1)
    vtc.wait(0)
    stamp_at(A, stamp == 4, 2)
    for op in xrd(0): A(op)
    vtc.wait(1)
    stamp_at(A, stamp == 4, 3)
    for op in xrd(1): A(op)
    A("s_waitcnt lgkmcnt(0)")
    for j in (2, 3):
        for op in xops(j):
            A(op); vtc.issue(j)
    stamp_at(A, stamp == 4, 4)
    A(wait_flag_ops(4, need(0)))
    stamp_at(A, stamp == 4, 5)
    stamp_at(A, stamp == 2, 1)
    xq = []
    for op in rd(0): L(op, 0)
    for op in rd(1): L(op, 1)
    for g in range(32):
        lwait(g)
        if g % 4 == 3:
            A(f"v_mov_b32 v{vPG}, {g//4+1}")
            L(f"ds_write_b32 v{vPA}, v{vPG}", "p")
        if g == 9:
            vtc.wait(3); xq += xrd(2) + xrd(3)
            A(f"s_cmp_eq_u32 s{sWAVE}, 0\ns_cbranch_scc0 K1_NORDY")
            A(f"v_mov_b32 v70, 0\nv_mov_b32 v71, 1\ns_mov_b64 exec, 1\nbuffer_store_byte v71, v70, s[24:27], s2 offen sc1\ns_mov_b64 exec, -1")
            A("K1_NORDY:")
        base = AB[g % 3]
        nx = rd(g + 2) if g + 2 < 32 else []
        for T in range(4):
            c = "0" if g == 0 else vr(vO+16*T,16)
            A(f"v_mfma_f32_32x32x16_bf16 {vr(vO+16*T,16)}, {vr(base+4*T,4)}, a[{aX+4*g}:{aX+4*g+3}], {c}")
            if T == 0 and nx and (g + 2) % 4 == 0:
                A(wait_flag_ops(4, need((g + 2) // 4)))
            for op in nx[2*T:2*T+2]: L(op, g + 2)
            if xq: L(xq.pop(0), "x")
        if g in (7, 15, 23): stamp_at(A, stamp == 2, 2 + g // 8)
    stamp_at(A, stamp == 2, 5)
    stamp_at(A, stamp == 1, 1)
    A(f"s_mov_b32 s{sSEEN}, 0\ns_mov_b32 s{sTILE}, 1")
    def wait_landed_ops():
        if opt.get("nowait", 0): return f"s_cmp_ge_u32 s{sSEEN}, 0\ns_add_u32 s{sTILE}, s{sTILE}, 1"
        return wait_flag_ops(0, f"s{sTILE}") + f"\ns_add_u32 s{sTILE}, s{sTILE}, 1"
    def kreads(slot):
        return [f"ds_read_b128 {vr(vKF+4*s,4)}, v{vKA+s} offset:{LK+slot*8192}" for s in range(8)]
    A(wait_landed_ops())
    for op in kreads(0): A(op)
    A("s_nop 7")
    for s in range(8):
        T, hh = s // 2, s % 2
        src = vO + 16 * T + 8 * hh
        d = vQ + 4 * s
        for j in range(4):
            A(f"v_cvt_pk_bf16_f32 v{d+j}, v{src+2*j}, v{src+2*j+1}")
        A("s_nop 1")
        A(f"v_permlane32_swap_b32 v{d}, v{d+2}")
        A(f"v_permlane32_swap_b32 v{d+1}, v{d+3}")

    def consumed():
        A(f"v_add_u32 v{vPG}, 1, v{vPG}\nds_write_b32 v{vPA}, v{vPG}")
    NE1 = opt.get("ne1", 10)
    def fma_ops(Sc): return [f"v_fma_f32 v{vP+r}, v{Sc+r}, s{sC}, v{vNMC}" for r in range(16)]
    def exp_ops(): return [f"v_exp_f32 v{vP+r}, v{vP+r}" for r in range(16)]
    def sum_ops():
        ops = [f"v_add_f32 v{vTS}, v{vP}, v{vP+1}", f"v_add_f32 v{vTMP}, v{vP+2}, v{vP+3}"]
        for r in range(4, 16, 2):
            ops += [f"v_add_f32 v{vTS}, v{vTS}, v{vP+r}", f"v_add_f32 v{vTMP}, v{vTMP}, v{vP+r+1}"]
        ops.append(f"v_add_f32 v{vTS}, v{vTS}, v{vTMP}")
        return ops
    def part1(Sc):
        fm, ex = fma_ops(Sc), exp_ops()[:NE1]
        seq = fm[:4]; rest = fm[4:]
        for i in range(max(len(rest), len(ex))):
            if i < len(ex): seq.append(ex[i])
            if i < len(rest): seq.append(rest[i])
        return seq
    def cost(op):
        if op.startswith("v_exp"): return 8
        if op.startswith("ds_"): return opt.get("dscost", 8)
        return 4 * (op.count("\n") + 1) if not op.startswith("s_cmp") else 12
    def interleave(mfmas, fillers):
        tot = sum(cost(o) for o in fillers)
        n = len(mfmas)
        if n == 0:
            for op in fillers: A(op)
            return
        acc = 0; k = 0
        for i, m in enumerate(mfmas):
            A(m)
            tgt = tot * (i + 1) / n
            while k < len(fillers) and (acc + cost(fillers[k]) / 2 <= tgt or i == n - 1):
                A(fillers[k]); acc += cost(fillers[k]); k += 1
    def qk(Sn):
        return [f"v_mfma_f32_32x32x16_bf16 {vr(Sn,16)}, {vr(vKF+4*s,4)}, {vr(vQ+4*s,4)}, {'0' if s == 0 else vr(Sn,16)}" for s in range(8)]

    A("s_waitcnt lgkmcnt(0)")
    z = [f"v_mov_b32 v{vO+r}, 0" for r in range(64)] + [f"v_mov_b32 v{vNMC}, 0x7f800000", f"v_mov_b32 v{vL}, 0"]
    interleave(qk(vS[0]), z)
    consumed()
    A(wait_landed_ops())
    for op in kreads(1): A(op)
    A("s_nop 7")
    for op in part1(vS[0]): A(op)

    def iteration(tag, k, last):
        par = k % 2
        Sc, Sn = vS[par], vS[par ^ 1]
        vslot = (k + 1) % 8
        A("s_waitcnt lgkmcnt(0)")
        vrd = [f"ds_read_b64_tr_b16 a[{aVF+16*u+4*T+2*t}:{aVF+16*u+4*T+2*t+1}], v{vVA+T} offset:{vslot*8192+(16*u+8*t)*256}"
               for u in range(2) for T in range(4) for t in range(2)]
        ex = exp_ops()[NE1:]
        sm = sum_ops()
        f = []
        rest = ex + ["s_nop 0"] + sm
        ri = 0
        for i in range(16):
            f.append(vrd[i])
            if i % 2 == 1:
                take = 1 if ri < len(ex) else 3
                f += rest[ri:ri+take]; ri += take
        f += rest[ri:]
        if opt.get("nowait", 0): f.append(f"v_cmp_nge_f32 vcc, s{sTHR}, v{vTS}\ns_nop 0\nK1_CK{tag}:")
        else: f.append(f"v_cmp_nge_f32 vcc, s{sTHR}, v{vTS}\ns_cbranch_vccnz K1_RARE{tag}\nK1_CK{tag}:")
        f.append(f"v_add_f32 v{vL}, v{vL}, v{vTS}")
        f += [f"v_cvt_pk_bf16_f32 v{vPK+j}, v{vP+2*j}, v{vP+2*j+1}" for j in range(8)]
        interleave([] if last else qk(Sn), f)
        A("s_waitcnt lgkmcnt(0)")
        if not last: consumed()
        else: A("s_nop 1")
        pv = [f"v_mfma_f32_32x32x16_bf16 {vr(vO+16*T,16)}, a[{aVF+16*u+4*T}:{aVF+16*u+4*T+3}], {vr(vPK+4*u,4)}, {vr(vO+16*T,16)}"
              for u in range(2) for T in range(4)]
        if last:
            for m in pv: A(m)
            return
        p1 = part1(Sn)
        h = opt.get("pollpos", 10)
        kr = kreads((k + 2) % 8)
        tail = []
        r2 = p1[h:]
        for i in range(8):
            tail.append(kr[i])
            if i % 2 == 1: tail += r2[:2]; r2 = r2[2:]
        tail += r2
        f = ["s_nop 3"] + p1[:h] + [wait_landed_ops()] + tail
        interleave(pv, f)

    def rare(tag, par):
        Sc = vS[par]
        A(f"K1_RARE{tag}:")
        A(f"v_max3_f32 v{vTMP}, v{Sc}, v{Sc+1}, v{Sc+2}")
        for r in range(3, 15, 2):
            A(f"v_max3_f32 v{vTMP}, v{vTMP}, v{Sc+r}, v{Sc+r+1}")
        A(f"v_max_f32 v{vTMP}, v{vTMP}, v{Sc+15}")
        A(f"v_mov_b32 v{vTMP2}, v{vTMP}\ns_nop 1\nv_permlane32_swap_b32 v{vTMP}, v{vTMP2}\nv_max_f32 v{vTMP}, v{vTMP}, v{vTMP2}")
        A(f"v_mul_f32 v{vTMP}, s{sC}, v{vTMP}")
        A(f"v_sub_f32 v{vTMP}, 0, v{vTMP}\nv_min_f32 v{vTMP}, v{vNMC}, v{vTMP}")
        A(f"v_sub_f32 v{vAL}, v{vTMP}, v{vNMC}\nv_exp_f32 v{vAL}, v{vAL}\nv_mov_b32 v{vNMC}, v{vTMP}")
        A(f"v_mul_f32 v{vL}, v{vL}, v{vAL}")
        for r in range(64):
            A(f"v_mul_f32 v{vO+r}, v{vO+r}, v{vAL}")
        for op in fma_ops(Sc) + exp_ops(): A(op)
        A("s_nop 0")
        for op in sum_ops(): A(op)

    if stamp == 8:
        A(wait_flag_ops(0, 6))
    if stamp == 7:
        A("s_memtime s[66:67]\ns_memrealtime s[64:65]\ns_waitcnt lgkmcnt(0)")
    A("K1_LOOP:")
    for k in range(8):
        if k == 7:
            A(f"s_cmp_eq_u32 s{sTILE}, 34\ns_cbranch_scc1 K1_LAST")
        iteration(k, k, False)
        if stamp == 8 and k == 0:
            A(f"s_cmp_eq_u32 s{sTILE}, 4\ns_cbranch_scc0 K1_NS8a")
            A("s_memtime s[66:67]\ns_memrealtime s[64:65]\ns_waitcnt lgkmcnt(0)")
            A("K1_NS8a:")
        if stamp == 8 and k == 3:
            A(f"s_cmp_eq_u32 s{sTILE}, 7\ns_cbranch_scc0 K1_NS8")
            A("s_memtime s[68:69]\ns_memrealtime s[76:77]\ns_waitcnt lgkmcnt(0)")
            A("K1_NS8:")
    if stamp == 1:
        for idx, val in ((2, 11), (3, 19), (4, 27)):
            A(f"s_cmp_eq_u32 s{sTILE}, {val}\ns_cbranch_scc0 K1_NS{idx}")
            stamp_at(A, 1, idx)
            A(f"K1_NS{idx}:")
    A("s_branch K1_LOOP")
    A("K1_LAST:")
    iteration(8, 7, True)
    stamp_at(A, stamp in (1, 3, 7), 6)
    if stamp in (3, 7): A("s_memtime s[68:69]\ns_waitcnt lgkmcnt(0)")
    A(f"v_mov_b32 v{vTMP}, v{vL}\ns_nop 1\nv_permlane32_swap_b32 v{vL}, v{vTMP}\nv_add_f32 v{vL}, v{vL}, v{vTMP}")
    A(f"v_rcp_f32 v{vAL}, v{vL}")
    A(f"s_mul_i32 s{sT0}, s{sB}, 6\ns_lshl_b32 s{sT1}, s{sWAVE}, 1\ns_add_u32 s{sT0}, s{sT0}, s{sT1}\ns_lshl_b32 s{sT0}, s{sT0}, 7")
    A(f"s_lshl_b32 s{sT1}, s{sH}, 2\ns_add_u32 s{sT0}, s{sT0}, s{sT1}\ns_lshl_b32 s{sT0}, s{sT0}, 10")
    A("s_nop 7")
    for T in range(4):
        for ip in range(2):
            src = vO + 16 * T + 8 * ip
            d = vKF + 4 * (2 * T + ip)
            for j in range(8):
                A(f"v_mul_f32 v{src+j}, v{src+j}, v{vAL}")
            for j in range(4):
                A(f"v_cvt_pk_bf16_f32 v{d+j}, v{src+2*j}, v{src+2*j+1}")
            A(f"buffer_store_dwordx4 {vr(d,4)}, v{vST}, s[{sWS}:{sWS+3}], s{sT0} offen offset:{T*1024+ip*512} sc1")
    A(f"s_add_u32 s{sWAVE}, s{sWAVE}, 1")
    A("s_branch K1_TAIL")
    for tag in range(9):
        par = tag % 2 if tag < 8 else 1
        A(f"K1_RARE{tag}:")
        A(f"s_call_b64 s[{sT0}:{sT1}], K1_RAREP{par}")
        A(f"s_branch K1_CK{tag}")
    for par in range(2):
        rare(f"P{par}", par)
        A(f"s_setpc_b64 s[{sT0}:{sT1}]")

    A("K1_LOADER:")
    vDKc = 4; vDK = 8; vDX = 12; vDV, vDW = 16, 17
    A("v_mov_b32 v20, 0\nv_mov_b32 v21, 0\nv_mov_b32 v22, 0\nv_mov_b32 v23, 0")
    A(f"ds_write_b128 v{vFL}, v[20:23]\nds_write_b128 v{vFL}, v[20:23] offset:16")
    A("v_xor_b32 v3, v2, v1")
    for n in range(4):
        A(f"v_xor_b32 v{vDKc+n}, {4*n}, v3\nv_lshlrev_b32 v{vDKc+n}, 4, v{vDKc+n}")
        A(f"v_lshl_add_u32 v{vDX+n}, v1, 10, v{vDKc+n}\nv_lshl_add_u32 v{vDK+n}, v1, 8, v{vDKc+n}")
    A("v_lshlrev_b32 v3, 2, v1\nv_xor_b32 v3, v3, v2\nv_lshlrev_b32 v3, 4, v3")
    A(f"v_lshl_add_u32 v{vDV}, v1, 8, v3\nv_lshl_add_u32 v{vDW}, v1, 13, v3")
    A(f"s_lshl_b32 s{sKVOFF}, s{sB}, 5\ns_add_u32 s{sKVOFF}, s{sKVOFF}, s{sH}\ns_lshl_b32 s{sKVOFF}, s{sKVOFF}, 18")
    A(f"s_mul_i32 s{sXG}, s{sB}, {96*1024}\ns_lshl_b32 s{sWQG}, s{sH}, 8")
    A(f"s_mov_b32 s{sSEEN}, 0")
    A("s_waitcnt lgkmcnt(0)")
    srd(A, sWQ, 10, 11, 4 << 20)
    vt = VmTrack(A)
    vLW = 24; vLD = 26; vLF = 28
    def pub(off, val):
        A(f"v_mov_b32 v{vLD}, {val}\nds_write_b32 v{vFL}, v{vLD} offset:{off}")
    def wait_prog(val):
        if val <= 0: return
        lab[0] += 1
        Lb = f"K1_P{lab[0]}"
        A(f"s_cmp_ge_u32 s{sSEEN}, {val}\ns_cbranch_scc1 {Lb}_OK")
        A(f"{Lb}:")
        A(f"ds_read_b96 {vr(vLF,3)}, v{vFL} offset:16\ns_waitcnt lgkmcnt(0)")
        A(f"v_min3_u32 v{vLF}, v{vLF}, v{vLF+1}, v{vLF+2}\ns_nop 0\nv_readfirstlane_b32 s{sSEEN}, v{vLF}")
        A(f"s_cmp_ge_u32 s{sSEEN}, {val}\ns_cbranch_scc0 {Lb}")
        A(f"{Lb}_OK:")
    def piece(name):
        j = int(name[1])
        if name[0] == "x":
            A(f"s_add_u32 s{sT1}, s{sXG}, {j*256}")
            for n in range(24):
                A(f"s_mov_b32 m0, {XB[j%2] + n*1024}")
                if n: A(f"s_add_u32 s{sT1}, s{sT1}, 4096")
                else: A("s_nop 0")
                A(f"buffer_load_dwordx4 v{vDX+n%4}, s[{sX}:{sX+3}], s{sT1} offen lds")
                vt.issue(name)
        else:
            A(f"s_add_u32 s{sT1}, s{sWQG}, {j*64*8192}")
            for n in range(16):
                A(f"s_mov_b32 m0, {WB[j%6][n//8] + (n%8)*1024}")
                if n: A(f"s_add_u32 s{sT1}, s{sT1}, {4*8192}")
                else: A("s_nop 0")
                A(f"buffer_load_dwordx4 v{vDW}, s[{sWQ}:{sWQ+3}], s{sT1} offen lds")
                vt.issue(name)
    qpub = [0]
    def last_idx(tag): return max(i for i, t in enumerate(vt.ops) if t == tag)
    def pub_q():
        k = qpub[0]
        while k < len(SEQ) and SEQ[k] in vt.ops and last_idx(SEQ[k]) <= vt.done: k += 1
        if k > qpub[0]:
            pub(4, k); qpub[0] = k
    def settle(n):
        if len(vt.ops) - 1 - vt.done > n:
            A(f"s_waitcnt vmcnt({n})"); vt.done = len(vt.ops) - 1 - n
        pub_q()
    def parts(u):
        p = []
        if u <= 31: p.append((sK, LK, True, u))
        if u >= 1: p.append((sV, LV, False, u - 1))
        return p
    def dma_unit(u):
        slot = u % 8
        for (srdb, lbase, isk, tile) in parts(u):
            for g in range(2):
                A(f"s_mov_b32 m0, {lbase + slot*8192 + g*4096}\ns_add_u32 s{sT2}, s{sKVOFF}, {tile*8192 + g*4096}")
                for n in range(4):
                    vo = vDK + n if isk else vDV
                    A(f"buffer_load_dwordx4 v{vo}, s[{srdb}:{srdb+3}], s{sT2} offen offset:{n*1024}{NT} lds")
                    vt.issue(("u", u))
    QN = opt.get("qn", 40)
    A("s_barrier")
    srd(A, sK, 6, 7, 64 << 20)
    srd(A, sV, 8, 9, 64 << 20)
    A(f"v_lshlrev_b32 v{vLW}, 4, v0\nv_add_u32 v{vLW+1}, {LV}, v{vLW}")
    def rbuf(u, i):
        f = (u - 1) % 7
        if f < 3:
            b = 32 + f * 64 + 4 * i
            return f"v[{b}:{b+3}]"
        b = (f - 3) * 64 + 4 * i
        return f"a[{b}:{b+3}]"
    def reg_unit(u, pace=None):
        for pi, (srdb, lbase, isk, tile) in enumerate(parts(u)):
            for g in range(2):
                if pace is not None: settle(pace)
                A(f"s_add_u32 s{sT2}, s{sKVOFF}, {tile*8192 + g*4096}")
                for n in range(4):
                    vo = vDK + n if isk else vDV
                    A(f"buffer_load_dwordx4 {rbuf(u, pi*8+g*4+n)}, v{vo}, s[{srdb}:{srdb+3}], s{sT2} offen offset:{n*1024}{NT}")
                    vt.issue(("u", u))
    def dump_unit(u):
        slot = u % 8
        for pi in range(2):
            for i in range(8):
                A(f"ds_write_b128 v{vLW+pi}, {rbuf(u, pi*8+i)} offset:{slot*8192 + i*1024}")
        A("s_waitcnt lgkmcnt(0)")
    def qblock():
        for i, p in enumerate(SEQ):
            if p in PCOND:
                vt.wait(SEQ[need(PCOND[p]) - 1]); pub_q()
                wait_prog(PCOND[p])
            piece(p)
            if i >= 2: settle(QN)
    def kvpre(pace):
        dma_unit(0)
        for u in range(1, 8): reg_unit(u, pace)
    PB = opt.get("paceb", 44)
    W = opt.get("win", 3)
    srd(A, sWS, 18, 19, 256 << 20)
    A(f"s_cmp_eq_u32 s{sGRP}, 1\ns_cbranch_scc1 K1_LB")
    qblock()
    stamp_at(A, stamp in (1, 6), 1)
    upub = [0]
    def pub_u(upto):
        if upto > upub[0]:
            vt.wait(("u", upto - 1)); pub_q(); pub(0, upto); upub[0] = upto
    JOIN = 15
    for u in range(JOIN + W):
        if u < 8:
            c = UCOND[u]
            if c > 0:
                vt.wait(SEQ[need(min(c, 7)) - 1]); pub_q()
        else:
            c = QD + u - 7
        wait_prog(c)
        dma_unit(u)
        if u <= 2:
            k = {0: 6, 1: 7, 2: 8}[u]
            vt.wait(SEQ[k - 1]); pub_q()
        if u >= W: pub_u(u - W + 1)
        if u - W + 1 in (2, 9): stamp_at(A, stamp == 6, {2: 2, 9: 3}[u - W + 1])
    assert upub[0] == JOIN
    A("s_branch K1_LJ")
    A("K1_LB:")
    vt.ops = []; vt.done = -1; qpub[0] = 0
    NPRE = opt.get("npre", 7)
    dma_unit(0)
    for u in range(1, NPRE + 1): reg_unit(u, PB)
    pub(8, 1)
    stamp_at(A, stamp in (1, 6), 1)
    qblock()
    pub(0, 1)
    for u in range(NPRE + 1, 8): reg_unit(u)
    for k in range(qpub[0] + 1, len(SEQ) + 1):
        vt.wait(SEQ[k - 1]); pub_q()
    for u in range(1, JOIN):
        wait_prog(UCOND[u] if u < 8 else QD + u - 7)
        vt.wait(("u", u))
        dump_unit(u)
        pub(0, u + 1)
        if u <= 7: reg_unit(u + 7)
        if u in (1, 8): stamp_at(A, stamp == 6, {1: 2, 8: 3}[u])
        nu = u + W
        if nu >= JOIN:
            wait_prog(QD + nu - 7)
            dma_unit(nu)
    A("K1_LJ:")
    vt.ops = [("u", u) for u in range(JOIN, JOIN + W) for _ in range(16)]; vt.done = -1; qpub[0] = len(SEQ)
    for u in range(JOIN, 33):
        vt.wait(("u", u))
        pub(0, u + 1)
        if u in (15, 20, 26): stamp_at(A, stamp == 6, {15: 4, 20: 5, 26: 6}[u])
        nu = u + W
        if nu <= 32:
            wait_prog(QD + nu - 7)
            dma_unit(nu)
    stamp_at(A, stamp == 1, 5)
    A("K1_TAIL:")
    sDBG, sOUT = 24, 28
    sMT, sNT, sBP = 54, 55, 56
    sOA, sWA, sLB = 57, 60, 61
    sF = 80
    sHH = 82
    sFO = 90; sTO = 91
    A("s_waitcnt lgkmcnt(0)\ns_barrier")
    stamp_at(A, stamp == 9, 1)
    srd(A, sWO, 12, 13, 4 << 20)
    srd(A, sDBG, 16, 17, 256)
    srd(A, sOUT, 14, 15, 8*96*512*2)
    A(f"s_and_b32 s{sT0}, s2, 7\ns_lshr_b32 s{sT1}, s2, 3")
    A(f"s_lshr_b32 s{sMT}, s{sT0}, 1\ns_lshl_b32 s{sMT}, s{sMT}, 2\ns_and_b32 s{sT2}, s{sT1}, 3\ns_add_u32 s{sMT}, s{sMT}, s{sT2}")
    A(f"s_and_b32 s{sNT}, s{sT0}, 1\ns_lshl_b32 s{sNT}, s{sNT}, 3\ns_lshr_b32 s{sT2}, s{sT1}, 2\ns_add_u32 s{sNT}, s{sNT}, s{sT2}")
    A(f"s_lshr_b32 s{sBP}, s{sMT}, 1")
    A(f"s_and_b32 s{sT0}, s{sBP}, 1\ns_xor_b32 s{sT1}, s{sT0}, 1")
    for i in range(4):
        A(f"s_add_u32 s{sHH+i}, s{sT0}, {2*i}\ns_add_u32 s{sHH+4+i}, s{sT1}, {2*i}")
    A(f"s_lshl_b32 s{sWA}, s{sWAVE}, 20\ns_lshl_b32 s{sT0}, s{sNT}, 6\ns_add_u32 s{sWA}, s{sWA}, s{sT0}")
    A(f"s_mul_i32 s{sOA}, s{sMT}, {3*131072}\ns_lshl_b32 s{sT0}, s{sWAVE}, 15\ns_add_u32 s{sOA}, s{sOA}, s{sT0}")
    A(f"s_mul_i32 s{sLB}, s{sWAVE}, {36*KB}")
    A(f"s_lshl_b32 s{sFO}, s2, 7\ns_lshl_b32 s{sT0}, s{sWAVE}, 5\ns_add_u32 s{sFO}, s{sFO}, s{sT0}\ns_add_u32 s{sFO}, s{sFO}, {WS_MB}")
    A(f"s_mov_b64 s[{sF}:{sF+1}], 0")
    vWD, vTR, vOL, vZ, vFT = 4, 6, 8, 12, 14
    A("v_lshrrev_b32 v3, 2, v0\nv_and_b32 v19, 3, v0\nv_and_b32 v20, 1, v1\nv_lshlrev_b32 v20, 1, v20\nv_xor_b32 v19, v19, v20\nv_lshlrev_b32 v19, 4, v19")
    A(f"v_lshl_add_u32 v{vWD}, v3, 10, v19")
    A("v_lshrrev_b32 v3, 1, v1\nv_lshlrev_b32 v3, 4, v3\nv_and_b32 v19, 1, v1\nv_lshl_add_u32 v3, v19, 2, v3\nv_lshrrev_b32 v20, 2, v2\nv_add_u32 v3, v3, v20")
    A("v_and_b32 v20, 3, v2\nv_lshlrev_b32 v20, 3, v20\nv_lshl_add_u32 v3, v3, 6, v20")
    A(f"v_add_u32 v3, s{sLB}, v3")
    A(f"v_lshl_add_u32 v{vTR}, v19, 5, v3\nv_xor_b32 v19, 1, v19\nv_lshl_add_u32 v{vTR+1}, v19, 5, v3")
    A(f"v_lshlrev_b32 v{vOL}, 4, v0\nv_add_u32 v{vOL+1}, 0x20000, v{vOL}\nv_add_u32 v{vOL+2}, 0x40000, v{vOL}\nv_mov_b32 v{vZ}, 0")
    A(f"v_and_b32 v{vZ+1}, 7, v0\nv_lshlrev_b32 v{vZ+1}, 2, v{vZ+1}")
    vACC = 32; vOB = 64
    tt = VmTrack(A)
    for _ in range(8): tt.issue("ost")
    def wo_dma(slot):
        A(f"s_lshl_b32 s{sT1}, s{sHH+slot}, 17\ns_add_u32 s{sT1}, s{sT1}, s{sWA}\ns_add_u32 s{sT0}, s{sLB}, {(slot%4)*8192}")
        for n in range(8):
            A(f"s_mov_b32 m0, s{sT0}\ns_add_u32 s{sT0}, s{sT0}, 1024")
            A(f"buffer_load_dwordx4 v{vWD}, s[{sWO}:{sWO+3}], s{sT1} offen lds")
            A(f"s_add_u32 s{sT1}, s{sT1}, 16384")
            tt.issue(("w", slot))
    def wo_tr(slot):
        for ks in range(4):
            for ci in range(2):
                for t in range(2):
                    r = slot * 32 + ks * 8 + ci * 4 + t * 2
                    A(f"ds_read_b64_tr_b16 a[{r}:{r+1}], v{vTR+ci} offset:{(slot%4)*8192 + ks*2048 + t*512}")
    def flag_wait(slot):
        lab[0] += 1
        Lb = f"K1_F{lab[0]}"
        A(f"s_bitcmp1_b32 s{sF}, s{sHH+slot}\ns_cbranch_scc1 {Lb}_OK")
        A(f"s_mov_b32 s{sTO}, 0")
        A(f"{Lb}:")
        A(f"buffer_load_dword v{vFT}, v{vZ+1}, s[{sWS}:{sWS+3}], s{sFO} offen sc1\ns_waitcnt vmcnt(0)")
        A(f"v_cmp_ne_u32 vcc, 0, v{vFT}\ns_nop 1\ns_mov_b32 s{sF}, vcc_lo")
        A(f"s_bitcmp1_b32 s{sF}, s{sHH+slot}\ns_cbranch_scc1 {Lb}_OK")
        A(f"s_sleep {opt.get('psleep', 4)}\ns_add_u32 s{sTO}, s{sTO}, 1\ns_cmp_lt_u32 s{sTO}, 0x40000\ns_cbranch_scc1 {Lb}")
        A(f"{Lb}_OK:")
    def o_load(slot):
        flag_wait(slot)
        A(f"s_lshl_b32 s{sT1}, s{sHH+slot}, 12\ns_add_u32 s{sT1}, s{sT1}, s{sOA}")
        base = vOB + (slot % 4) * 48
        for ks in range(4):
            for qi in range(3):
                A(f"buffer_load_dwordx4 {vr(base+ks*12+qi*4,4)}, v{vOL+qi}, s[{sWS}:{sWS+3}], s{sT1} offen offset:{ks*1024} sc1")
                tt.issue(("o", slot))
    def o_mma(slot):
        base = vOB + (slot % 4) * 48
        for ks in range(4):
            for qi in range(3):
                for ci in range(2):
                    t = vACC + 4 * (qi * 2 + ci)
                    r = slot * 32 + ks * 8 + ci * 4
                    c = "0" if (slot == 0 and ks == 0) else vr(t, 4)
                    A(f"v_mfma_f32_16x16x32_bf16 {vr(t,4)}, a[{r}:{r+3}], {vr(base+ks*12+qi*4,4)}, {c}")
    for sl in range(4): wo_dma(sl)
    A(f"s_cmp_eq_u32 s{sWAVE}, 0\ns_cbranch_scc1 K1_NOPUB")
    tt.wait("ost")
    A(f"v_mov_b32 v16, 1\ns_mov_b64 exec, 1\nds_add_rtn_u32 v17, v{vFL}, v16 offset:12\ns_waitcnt lgkmcnt(0)\ns_mov_b64 exec, -1")
    A(f"v_readfirstlane_b32 s{sT0}, v17\ns_cmp_eq_u32 s{sT0}, 2\ns_cbranch_scc0 K1_NOPUB2")
    A(f"s_and_b32 s{sT0}, s{sB}, 6\ns_and_b32 s{sT1}, s{sB}, 1\ns_lshl_b32 s{sT1}, s{sT1}, 4\ns_add_u32 s{sT0}, s{sT0}, s{sT1}")
    A("v_and_b32 v19, 31, v0\nv_and_b32 v20, 1, v19\nv_lshrrev_b32 v21, 2, v19\nv_lshl_add_u32 v20, v21, 5, v20\nv_bfe_u32 v21, v19, 1, 1\nv_lshl_add_u32 v20, v21, 3, v20")
    A(f"v_add_u32 v20, s{sT0}, v20")
    A(f"s_mov_b32 s{sTO}, 0")
    A("K1_RDYW:")
    A(f"buffer_load_ubyte v21, v20, s[{sDBG}:{sDBG+3}], 0 offen sc1\ns_waitcnt vmcnt(0)")
    A("v_cmp_eq_u32 vcc, 0, v21\ns_cbranch_vccz K1_RDYOK")
    A(f"s_sleep 8\ns_add_u32 s{sTO}, s{sTO}, 1\ns_cmp_lt_u32 s{sTO}, 0x40000\ns_cbranch_scc1 K1_RDYW")
    A("K1_RDYOK:")
    A(f"v_lshlrev_b32 v20, 7, v20\ns_lshl_b32 s{sT0}, s{sH}, 2\ns_add_u32 s{sT0}, s{sT0}, {WS_MB}\nv_mov_b32 v16, 1")
    A(f"buffer_store_dword v16, v20, s[{sWS}:{sWS+3}], s{sT0} offen sc1")
    A("s_waitcnt vmcnt(0)")
    A("K1_NOPUB2:")
    A("K1_NOPUB:")
    tt.done = -1
    stamp_at(A, stamp == 9, 2)
    o_load(0); o_load(1)
    tt.wait(("w", 3))
    for sl in range(4): wo_tr(sl)
    A("s_waitcnt lgkmcnt(0)")
    for sl in range(4, 8): wo_dma(sl)
    stamp_at(A, stamp == 9, 3)
    tt.wait(("o", 0)); o_mma(0)
    o_load(2)
    tt.wait(("o", 1)); o_mma(1)
    o_load(3); o_load(4)
    tt.wait(("w", 7))
    for sl in range(4, 8): wo_tr(sl)
    tt.wait(("o", 2)); o_mma(2)
    o_load(5)
    tt.wait(("o", 3)); o_mma(3)
    o_load(6); o_load(7)
    A("s_waitcnt lgkmcnt(0)")
    for sl in range(4, 8):
        tt.wait(("o", sl)); o_mma(sl)
    stamp_at(A, stamp == 9, 4)
    A("s_nop 7\ns_nop 3")
    A(f"v_add_u32 v5, s{sLB}, v{vOL}")
    for t in range(6):
        A(f"ds_write_b128 v5, {vr(vACC+4*t,4)} offset:{t*1024}")
    A("s_waitcnt lgkmcnt(0)\ns_barrier")
    A("v_and_b32 v6, 15, v0\nv_lshlrev_b32 v6, 10, v6\nv_lshl_add_u32 v6, v1, 3, v6")
    for rep in range(2):
        if rep == 1: A(f"s_cmp_ge_u32 s{sWAVE}, 2\ns_cbranch_scc1 K1_FIN\ns_add_u32 s{sWAVE}, s{sWAVE}, 4")
        A(f"s_lshl_b32 s{sT0}, s{sWAVE}, 10\nv_add_u32 v5, s{sT0}, v{vOL}")
        A(f"v_add_u32 v7, {72*KB}, v5")
        b = 64 + 16 * rep
        A(f"ds_read_b128 {vr(b,4)}, v5\nds_read_b128 {vr(b+4,4)}, v5 offset:{36*KB}\nds_read_b128 {vr(b+8,4)}, v7\nds_read_b128 {vr(b+12,4)}, v7 offset:{36*KB}")
        A("s_waitcnt lgkmcnt(0)")
        for r in range(4):
            A(f"v_add_f32 v{b+r}, v{b+r}, v{b+4+r}\nv_add_f32 v{b+8+r}, v{b+8+r}, v{b+12+r}")
        for r in range(4):
            A(f"v_add_f32 v{b+r}, v{b+r}, v{b+8+r}")
        A(f"v_cvt_pk_bf16_f32 v{b}, v{b}, v{b+1}\nv_cvt_pk_bf16_f32 v{b+1}, v{b+2}, v{b+3}")
        A(f"s_lshr_b32 s{sT0}, s{sWAVE}, 1\ns_lshl_b32 s{sT0}, s{sT0}, 4\ns_mul_i32 s{sT1}, s{sMT}, 48\ns_add_u32 s{sT0}, s{sT0}, s{sT1}\ns_lshl_b32 s{sT0}, s{sT0}, 10")
        A(f"s_and_b32 s{sT1}, s{sWAVE}, 1\ns_lshl_b32 s{sT1}, s{sT1}, 5\ns_add_u32 s{sT0}, s{sT0}, s{sT1}\ns_lshl_b32 s{sT1}, s{sNT}, 6\ns_add_u32 s{sT0}, s{sT0}, s{sT1}")
        A(f"buffer_store_dwordx2 {vr(b,2)}, v6, s[{sOUT}:{sOUT+3}], s{sT0} offen")
    A(f"s_sub_u32 s{sWAVE}, s{sWAVE}, 4")
    A("K1_FIN:")
    if stamp:
        stamp_store(A, sWS, sT0, f"s_lshl_b32 s{sT0}, s2, 2\ns_add_u32 s{sT0}, s{sT0}, s{sWAVE}", WS_STAMP)
    A("K1_END:\ns_endpgm")

def main(stamp=0, opt=None):
    A = Asm()
    A.raw(f"; @launch grid=(256,1,1) block=(256,1,1) lds={LDS_BYTES}")
    A.raw('.amdgcn_target "amdgcn-amd-amdhsa--gfx950"\n.text')
    A.raw(".globl standalone__gqa_block_cached__near_ridge_kernel\n.type standalone__gqa_block_cached__near_ridge_kernel,@function")
    gen_k1(A, stamp, opt)
    A.raw('.section .rodata,"a"')
    A.raw(kd("standalone__gqa_block_cached__near_ridge_kernel", 512, 256))
    return A.text()

if __name__ == "__main__":
    stamp = 1 if "--stamp" in sys.argv else (2 if "--stamp2" in sys.argv else (3 if "--stamp3" in sys.argv else (4 if "--stamp4" in sys.argv else (5 if "--stamp5" in sys.argv else (6 if "--stamp6" in sys.argv else (7 if "--stamp7" in sys.argv else (8 if "--stamp8" in sys.argv else (9 if "--stamp9" in sys.argv else 0))))))))
    opt = {}
    for a in sys.argv[1:]:
        if a.startswith("--") and "=" in a:
            k, v = a[2:].split("="); opt[k] = int(v)
    out = [a for a in sys.argv[1:] if not a.startswith("--")][0]
    open(out, "w").write(main(stamp, opt))
```

```python
import sys, struct
from gen1 import Asm, vr, f32bits, srd, VmTrack, stamp_at, stamp_store, gen_k2, kd, WS_O, WS_WO, WS_STAMP, SCALE_LOG2E, THRESH

KB = 1024
LK = 0
LV = 64 * KB
LX = 128 * KB
WB = [(128*KB, 136*KB), (144*KB, 64*KB), (8*KB, 16*KB), (72*KB, 80*KB), (24*KB, 32*KB), (88*KB, 96*KB)]
XB = [40 * KB, 104 * KB]
FL = 152 * KB
LDS_BYTES = 160 * KB
WS_MB = 7 << 20
QD = 8
NT = " nt"
SEQ = ["w0", "w1", "w2", "w3", "w4", "w5", "w6", "w7"]
PCOND = {"w6": 1, "w7": 2}
def need(hc): return hc + 1
UCOND = {0: 0, 1: 4, 2: 4, 3: 6, 4: 6, 5: 6, 6: 6, 7: 6}

def gen_k1(A, stamp=0, opt=None):
    opt = opt or {}
    sX, sK, sV, sWQ, sWO, sWS = 20, 24, 28, 32, 36, 40
    sWAVE, sB, sH = 44, 45, 46
    sKVOFF = 47
    sT0, sT1, sT2, sT3 = 48, 49, 50, 51
    sC, sTHR = 52, 53
    sXG = 54; sWQG = 55
    sTILE = 58; sSEEN = 59
    A.raw(".p2align 8\nstandalone__gqa_block_cached__near_ridge_kernel:")
    A("s_cmp_ge_u32 s2, 256\ns_cbranch_scc1 K1_END")
    if stamp:
        for i in range(8): A(f"s_mov_b64 s[{64+2*i}:{65+2*i}], 0")
    stamp_at(A, stamp, 0)
    if stamp == 3: A("s_memtime s[66:67]\ns_waitcnt lgkmcnt(0)")
    A("s_load_dwordx16 s[4:19], s[0:1], 0")
    A("v_lshrrev_b32 v1, 6, v0\nv_and_b32 v0, 63, v0\ns_nop 0")
    A(f"v_readfirstlane_b32 s{sWAVE}, v1")
    if opt.get("map", 0) == 0:
        A(f"s_and_b32 s{sT0}, s2, 7\ns_lshr_b32 s{sT1}, s2, 3\ns_and_b32 s{sT2}, s{sT1}, 3")
        A(f"s_lshl_b32 s{sH}, s{sT0}, 2\ns_add_u32 s{sH}, s{sH}, s{sT2}\ns_lshr_b32 s{sB}, s{sT1}, 2")
    else:
        A(f"s_and_b32 s{sT0}, s2, 3\ns_lshl_b32 s{sH}, s{sT0}, 3\ns_lshr_b32 s{sT1}, s2, 3\ns_and_b32 s{sT2}, s{sT1}, 7\ns_add_u32 s{sH}, s{sH}, s{sT2}")
        A(f"s_and_b32 s{sB}, s2, 4\ns_lshr_b32 s{sT1}, s{sT1}, 3\ns_add_u32 s{sB}, s{sB}, s{sT1}")
    sGRP = 62
    G = opt.get("grp", 1)
    if G == 0: A(f"s_mov_b32 s{sGRP}, 0")
    elif G == 2: A(f"s_mov_b32 s{sGRP}, 1")
    else: A(f"s_add_u32 s{sGRP}, s{sB}, s{sH}\ns_and_b32 s{sGRP}, s{sGRP}, 1")
    A("v_lshrrev_b32 v1, 4, v0\nv_and_b32 v2, 15, v0")
    vFL = 18
    A(f"v_mov_b32 v{vFL}, {FL}")
    A(f"s_cmp_eq_u32 s{sWAVE}, 0\ns_cbranch_scc1 K1_LOADER")
    lab = [0]

    A(f"s_sub_u32 s{sWAVE}, s{sWAVE}, 1")
    vDX = 64
    A("v_xor_b32 v3, v2, v1")
    for n in range(4):
        A(f"v_xor_b32 v{vDX+n}, {4*n}, v3\nv_lshlrev_b32 v{vDX+n}, 4, v{vDX+n}\nv_lshl_add_u32 v{vDX+n}, v1, 10, v{vDX+n}")
    A(f"s_mul_i32 s{sXG}, s{sB}, 96\ns_lshl_b32 s{sT0}, s{sWAVE}, 5\ns_add_u32 s{sXG}, s{sXG}, s{sT0}\ns_lshl_b32 s{sXG}, s{sXG}, 10")
    A(f"s_lshl_b32 s56, s{sWAVE}, 13")
    A("s_waitcnt lgkmcnt(0)\ns_barrier")
    srd(A, sX, 4, 5, 8*96*512*2)
    srd(A, sWS, 18, 19, 256 << 20)
    srd(A, 24, 16, 17, 256)
    A(f"v_and_b32 v70, 31, v0\nv_lshlrev_b32 v70, 2, v70\nv_mov_b32 v71, 0\ns_lshl_b32 s57, s2, 7\ns_add_u32 s57, s57, {WS_MB}")
    A(f"s_cmp_eq_u32 s{sWAVE}, 0\ns_cbranch_scc0 K1_NOCLR")
    A(f"buffer_store_dword v71, v70, s[{sWS}:{sWS+3}], s57 offen sc1")
    A("K1_NOCLR:")
    A(f"s_mov_b32 s61, 0\ns_mov_b32 s63, 0\nv_lshlrev_b32 v72, 4, v0")
    A(f"s_cmp_eq_u32 s{sGRP}, 0\ns_cbranch_scc1 K1_QGO")
    A(f"s_cmp_eq_u32 s{sWAVE}, 0\ns_cbranch_scc0 K1_QW")
    A("s_mov_b32 s61, 1")
    A(f"s_lshr_b32 s57, s2, 4\ns_lshl_b32 s57, s57, 3\ns_and_b32 s60, s2, 7\ns_add_u32 s57, s57, s60")
    A(f"v_lshlrev_b32 v72, 4, v0")
    TB = 8 * KB
    A("v_lshrrev_b32 v3, 1, v1\nv_lshlrev_b32 v3, 4, v3\nv_and_b32 v19, 1, v1\nv_lshl_add_u32 v3, v19, 2, v3\nv_lshrrev_b32 v19, 2, v2\nv_add_u32 v3, v3, v19")
    A(f"v_and_b32 v19, 3, v2\nv_lshlrev_b32 v19, 3, v19\nv_lshl_add_u32 v73, v3, 10, v19\nv_add_u32 v73, {TB}, v73")
    A(f"s_lshl_b32 s60, s57, 15\ns_add_u32 s60, s60, {WS_WO}")
    A("K1_TW0:")
    A(f"s_sleep 1\nds_read_b32 v58, v{vFL} offset:28\ns_waitcnt lgkmcnt(0)\nv_readfirstlane_b32 s{sT3}, v58")
    A(f"s_cmp_eq_u32 s{sT3}, 0\ns_cbranch_scc1 K1_TW0")
    def areg(ct): return 4 * ct if ct < 8 else 160 + 4 * (ct - 8)
    for ct in range(32):
        for t in range(2):
            A(f"ds_read_b64_tr_b16 a[{areg(ct)+2*t}:{areg(ct)+2*t+1}], v73 offset:{ct*32 + t*8192}")
    A("s_waitcnt lgkmcnt(0)")
    A(f"v_mov_b32 v71, 2\nds_write_b32 v{vFL}, v71 offset:28")
    A("s_mov_b32 s63, s60")
    A("K1_QW:")
    A(f"s_sleep 2\nds_read_b32 v58, v{vFL} offset:8\ns_waitcnt lgkmcnt(0)\nv_readfirstlane_b32 s{sT3}, v58")
    A(f"s_cmp_eq_u32 s{sT3}, 0\ns_cbranch_scc1 K1_QW")
    A("K1_QGO:")
    vtc = VmTrack(A)
    if opt.get("touch", 0):
        srd(A, sWQ, 10, 11, 4 << 20)
        A(f"s_lshr_b32 s57, s2, 3")
        A(f"s_cmp_eq_u32 s{sWAVE}, 2\ns_cbranch_scc1 K1_TW")
        A(f"s_mul_i32 s60, s57, 24576\ns_mul_i32 s61, s{sWAVE}, 12288\ns_add_u32 s60, s60, s61")
        A("v_lshlrev_b32 v70, 7, v0\nv_and_b32 v71, 31, v0\nv_lshlrev_b32 v71, 7, v71\nv_add_u32 v71, 8192, v71")
        A(f"buffer_load_dword v72, v70, s[{sX}:{sX+3}], s60 offen\nbuffer_load_dword v73, v71, s[{sX}:{sX+3}], s60 offen")
        A("s_branch K1_TD")
        A("K1_TW:")
        A(f"s_lshl_b32 s60, s57, 17\ns_and_b32 s61, s2, 7\ns_lshl_b32 s61, s61, 10\ns_add_u32 s60, s60, s61")
        A("v_lshrrev_b32 v70, 3, v0\nv_lshlrev_b32 v70, 13, v70\nv_and_b32 v71, 7, v0\nv_lshl_add_u32 v70, v71, 7, v70\nv_add_u32 v71, 0x10000, v70")
        A(f"buffer_load_dword v72, v70, s[{sWQ}:{sWQ+3}], s60 offen\nbuffer_load_dword v73, v71, s[{sWQ}:{sWQ+3}], s60 offen")
        A("K1_TD:")
        vtc.issue("t"); vtc.issue("t")
    def xops(j):
        ops = []
        for n in range(8):
            pre = f"s_add_u32 s57, s{sXG}, {j*256 + n*4096}\ns_add_u32 s60, s56, {XB[j%2] + n*1024}\ns_mov_b32 m0, s60\ns_nop 0\n"
            ops.append(pre + f"buffer_load_dwordx4 v{vDX+n%4}, s[{sX}:{sX+3}], s57 offen lds")
        return ops
    for j in range(2):
        for op in xops(j):
            A(op); vtc.issue(j)
    vKA = 20; vVA = 28
    vNMC, vL, vTS, vTMP, vTMP2, vAL = 48, 49, 50, 51, 52, 53
    vST = 54; vPG = 55; vPA = 56
    vF0 = 58
    vQ = 64; vO = 96
    vXA = [32, 40]
    vWA = [4, 8, 12]
    vS = [160, 176]
    vP = 192; vPK = 208; vKF = 216
    aVF = 0
    A(f"s_mov_b32 s{sC}, {hex(f32bits(SCALE_LOG2E))}\ns_mov_b32 s{sTHR}, {hex(f32bits(THRESH))}")
    A("v_and_b32 v3, 31, v0\nv_lshrrev_b32 v19, 5, v0")
    A("v_and_b32 v60, 15, v3\nv_xor_b32 v60, v60, v19\nv_lshlrev_b32 v60, 4, v60")
    A(f"v_lshl_add_u32 v{vKA}, v3, 8, v60")
    for s in range(1, 8):
        A(f"v_xor_b32 v{vKA+s}, {32*s}, v{vKA}")
    A(f"s_lshl_b32 s{sT0}, s{sWAVE}, 13\ns_add_u32 s{sT1}, s{sT0}, {XB[1]}\ns_add_u32 s{sT0}, s{sT0}, {XB[0]}")
    for s in range(8):
        A(f"v_add_u32 v{vXA[0]+s}, s{sT0}, v{vKA+s}\nv_add_u32 v{vXA[1]+s}, s{sT1}, v{vKA+s}")
    A("v_lshrrev_b32 v60, 2, v2")
    A("v_and_b32 v61, 1, v1\nv_lshlrev_b32 v61, 5, v61")
    A("v_and_b32 v62, 3, v2\nv_lshlrev_b32 v62, 3, v62")
    A("v_add_u32 v61, v61, v62")
    for T in range(4):
        A(f"v_xor_b32 v62, {T}, v60\nv_lshl_add_u32 v62, v62, 6, v61")
        A(f"v_lshl_add_u32 v63, v19, 2, v60\nv_lshl_add_u32 v{vVA+T}, v63, 8, v62")
        A(f"v_add_u32 v{vVA+T}, {LV}, v{vVA+T}")
        A(f"v_lshl_add_u32 v63, v19, 3, v60\nv_lshl_add_u32 v{vWA[0]+T}, v63, 8, v62")
        A(f"v_add_u32 v{vWA[1]+T}, {64*KB}, v{vWA[0]+T}\nv_add_u32 v{vWA[2]+T}, {128*KB}, v{vWA[0]+T}")
    A("v_lshrrev_b32 v62, 4, v3\nv_lshlrev_b32 v62, 17, v62\nv_and_b32 v63, 15, v3\nv_lshl_add_u32 v62, v63, 4, v62")
    A(f"v_lshl_add_u32 v{vST}, v19, 8, v62")
    A(f"s_lshl_b32 s{sT0}, s{sWAVE}, 2\ns_add_u32 s{sT0}, s{sT0}, {FL+16}\nv_mov_b32 v{vPA}, s{sT0}")
    A(f"s_mov_b32 s{sSEEN}, 0")
    srd(A, sWS, 18, 19, 256 << 20)

    def wait_flag_ops(off, val):
        lab[0] += 1
        L = f"K1_L{lab[0]}"
        return "\n".join([
            f"s_cmp_ge_u32 s{sSEEN}, {val}\ns_cbranch_scc1 {L}_OK",
            f"{L}:",
            f"ds_read_b32 v{vF0}, v{vFL} offset:{off}\ns_waitcnt lgkmcnt(0)\nv_readfirstlane_b32 s{sSEEN}, v{vF0}",
            f"s_cmp_ge_u32 s{sSEEN}, {val}\ns_cbranch_scc0 {L}",
            f"{L}_OK:"])

    AB = [vS[0], vS[1], vP]
    lops = []
    def L(op, tag):
        A(op); lops.append(tag)
    def lwait(tag):
        idx = max(i for i, t in enumerate(lops) if t == tag)
        A(f"s_waitcnt lgkmcnt({min(15, len(lops) - 1 - idx)})")
    def rd(g):
        hc, s4 = g // 4, g % 4
        base = AB[g % 3]
        o = []
        wb = WB[hc % 6][s4 // 2] + (s4 % 2) * 16 * 256
        reg = vWA[wb // (64*KB)]; off = wb % (64*KB)
        for T in range(4):
            for t in range(2):
                o.append(f"ds_read_b64_tr_b16 {vr(base+4*T+2*t,2)}, v{reg+T} offset:{off + 4*t*256}")
        return o
    aX = 32
    def xrd(j): return [f"ds_read_b128 a[{aX+32*j+4*s}:{aX+32*j+4*s+3}], v{vXA[j%2]+s}" for s in range(8)]
    stamp_at(A, stamp == 4, 1)
    vtc.wait(0)
    stamp_at(A, stamp == 4, 2)
    for op in xrd(0): A(op)
    vtc.wait(1)
    stamp_at(A, stamp == 4, 3)
    for op in xrd(1): A(op)
    A("s_waitcnt lgkmcnt(0)")
    for j in (2, 3):
        for op in xops(j):
            A(op); vtc.issue(j)
    stamp_at(A, stamp == 4, 4)
    A(wait_flag_ops(4, need(0)))
    stamp_at(A, stamp == 4, 5)
    stamp_at(A, stamp == 2, 1)
    xq = []
    for op in rd(0): L(op, 0)
    for op in rd(1): L(op, 1)
    for g in range(32):
        lwait(g)
        if g % 4 == 3:
            A(f"v_mov_b32 v{vPG}, {g//4+1}")
            L(f"ds_write_b32 v{vPA}, v{vPG}", "p")
        if g == 9:
            vtc.wait(3); xq += xrd(2) + xrd(3)
        if 10 <= g < 18:
            A(f"s_cmp_eq_u32 s61, 0\ns_cbranch_scc1 K1_NOST{g}")
            for c4 in range(4):
                ct = (g - 10) * 4 + c4
                A(f"buffer_store_dwordx4 a[{areg(ct)}:{areg(ct)+3}], v72, s[{sWS}:{sWS+3}], s63 offen offset:{c4*1024} sc1")
            A("s_add_u32 s63, s63, 4096")
            A(f"K1_NOST{g}:")
        base = AB[g % 3]
        nx = rd(g + 2) if g + 2 < 32 else []
        for T in range(4):
            c = "0" if g == 0 else vr(vO+16*T,16)
            A(f"v_mfma_f32_32x32x16_bf16 {vr(vO+16*T,16)}, {vr(base+4*T,4)}, a[{aX+4*g}:{aX+4*g+3}], {c}")
            if T == 0 and nx and (g + 2) % 4 == 0:
                A(wait_flag_ops(4, need((g + 2) // 4)))
            for op in nx[2*T:2*T+2]: L(op, g + 2)
            if xq: L(xq.pop(0), "x")
        if g in (7, 15, 23): stamp_at(A, stamp == 2, 2 + g // 8)
    stamp_at(A, stamp == 2, 5)
    stamp_at(A, stamp == 1, 1)
    A(f"s_mov_b32 s{sSEEN}, 0\ns_mov_b32 s{sTILE}, 1")
    def wait_landed_ops():
        if opt.get("nowait", 0): return f"s_cmp_ge_u32 s{sSEEN}, 0\ns_add_u32 s{sTILE}, s{sTILE}, 1"
        return wait_flag_ops(0, f"s{sTILE}") + f"\ns_add_u32 s{sTILE}, s{sTILE}, 1"
    def kreads(slot):
        return [f"ds_read_b128 {vr(vKF+4*s,4)}, v{vKA+s} offset:{LK+slot*8192}" for s in range(8)]
    A(wait_landed_ops())
    for op in kreads(0): A(op)
    A("s_nop 7")
    for s in range(8):
        T, hh = s // 2, s % 2
        src = vO + 16 * T + 8 * hh
        d = vQ + 4 * s
        for j in range(4):
            A(f"v_cvt_pk_bf16_f32 v{d+j}, v{src+2*j}, v{src+2*j+1}")
        A("s_nop 1")
        A(f"v_permlane32_swap_b32 v{d}, v{d+2}")
        A(f"v_permlane32_swap_b32 v{d+1}, v{d+3}")

    def consumed():
        A(f"v_add_u32 v{vPG}, 1, v{vPG}\nds_write_b32 v{vPA}, v{vPG}")
    NE1 = opt.get("ne1", 10)
    def fma_ops(Sc): return [f"v_fma_f32 v{vP+r}, v{Sc+r}, s{sC}, v{vNMC}" for r in range(16)]
    def exp_ops(): return [f"v_exp_f32 v{vP+r}, v{vP+r}" for r in range(16)]
    def sum_ops():
        ops = [f"v_add_f32 v{vTS}, v{vP}, v{vP+1}", f"v_add_f32 v{vTMP}, v{vP+2}, v{vP+3}"]
        for r in range(4, 16, 2):
            ops += [f"v_add_f32 v{vTS}, v{vTS}, v{vP+r}", f"v_add_f32 v{vTMP}, v{vTMP}, v{vP+r+1}"]
        ops.append(f"v_add_f32 v{vTS}, v{vTS}, v{vTMP}")
        return ops
    def part1(Sc):
        fm, ex = fma_ops(Sc), exp_ops()[:NE1]
        seq = fm[:4]; rest = fm[4:]
        for i in range(max(len(rest), len(ex))):
            if i < len(ex): seq.append(ex[i])
            if i < len(rest): seq.append(rest[i])
        return seq
    def cost(op):
        if op.startswith("v_exp"): return 8
        if op.startswith("ds_"): return opt.get("dscost", 8)
        return 4 * (op.count("\n") + 1) if not op.startswith("s_cmp") else 12
    def interleave(mfmas, fillers):
        tot = sum(cost(o) for o in fillers)
        n = len(mfmas)
        if n == 0:
            for op in fillers: A(op)
            return
        acc = 0; k = 0
        for i, m in enumerate(mfmas):
            A(m)
            tgt = tot * (i + 1) / n
            while k < len(fillers) and (acc + cost(fillers[k]) / 2 <= tgt or i == n - 1):
                A(fillers[k]); acc += cost(fillers[k]); k += 1
    def qk(Sn):
        return [f"v_mfma_f32_32x32x16_bf16 {vr(Sn,16)}, {vr(vKF+4*s,4)}, {vr(vQ+4*s,4)}, {'0' if s == 0 else vr(Sn,16)}" for s in range(8)]

    A("s_waitcnt lgkmcnt(0)")
    z = [f"v_mov_b32 v{vO+r}, 0" for r in range(64)] + [f"v_mov_b32 v{vNMC}, 0x7f800000", f"v_mov_b32 v{vL}, 0"]
    interleave(qk(vS[0]), z)
    consumed()
    A(wait_landed_ops())
    for op in kreads(1): A(op)
    A("s_nop 7")
    for op in part1(vS[0]): A(op)

    def iteration(tag, k, last):
        par = k % 2
        Sc, Sn = vS[par], vS[par ^ 1]
        vslot = (k + 1) % 8
        A("s_waitcnt lgkmcnt(0)")
        vrd = [f"ds_read_b64_tr_b16 a[{aVF+16*u+4*T+2*t}:{aVF+16*u+4*T+2*t+1}], v{vVA+T} offset:{vslot*8192+(16*u+8*t)*256}"
               for u in range(2) for T in range(4) for t in range(2)]
        ex = exp_ops()[NE1:]
        sm = sum_ops()
        f = []
        rest = ex + ["s_nop 0"] + sm
        ri = 0
        for i in range(16):
            f.append(vrd[i])
            if i % 2 == 1:
                take = 1 if ri < len(ex) else 3
                f += rest[ri:ri+take]; ri += take
        f += rest[ri:]
        if opt.get("nowait", 0): f.append(f"v_cmp_nge_f32 vcc, s{sTHR}, v{vTS}\ns_nop 0\nK1_CK{tag}:")
        else: f.append(f"v_cmp_nge_f32 vcc, s{sTHR}, v{vTS}\ns_cbranch_vccnz K1_RARE{tag}\nK1_CK{tag}:")
        f.append(f"v_add_f32 v{vL}, v{vL}, v{vTS}")
        f += [f"v_cvt_pk_bf16_f32 v{vPK+j}, v{vP+2*j}, v{vP+2*j+1}" for j in range(8)]
        interleave([] if last else qk(Sn), f)
        A("s_waitcnt lgkmcnt(0)")
        if not last: consumed()
        else: A("s_nop 1")
        pv = [f"v_mfma_f32_32x32x16_bf16 {vr(vO+16*T,16)}, a[{aVF+16*u+4*T}:{aVF+16*u+4*T+3}], {vr(vPK+4*u,4)}, {vr(vO+16*T,16)}"
              for u in range(2) for T in range(4)]
        if last:
            for m in pv: A(m)
            return
        p1 = part1(Sn)
        h = opt.get("pollpos", 10)
        kr = kreads((k + 2) % 8)
        tail = []
        r2 = p1[h:]
        for i in range(8):
            tail.append(kr[i])
            if i % 2 == 1: tail += r2[:2]; r2 = r2[2:]
        tail += r2
        f = ["s_nop 3"] + p1[:h] + [wait_landed_ops()] + tail
        interleave(pv, f)

    def rare(tag, par):
        Sc = vS[par]
        A(f"K1_RARE{tag}:")
        A(f"v_max3_f32 v{vTMP}, v{Sc}, v{Sc+1}, v{Sc+2}")
        for r in range(3, 15, 2):
            A(f"v_max3_f32 v{vTMP}, v{vTMP}, v{Sc+r}, v{Sc+r+1}")
        A(f"v_max_f32 v{vTMP}, v{vTMP}, v{Sc+15}")
        A(f"v_mov_b32 v{vTMP2}, v{vTMP}\ns_nop 1\nv_permlane32_swap_b32 v{vTMP}, v{vTMP2}\nv_max_f32 v{vTMP}, v{vTMP}, v{vTMP2}")
        A(f"v_mul_f32 v{vTMP}, s{sC}, v{vTMP}")
        A(f"v_sub_f32 v{vTMP}, 0, v{vTMP}\nv_min_f32 v{vTMP}, v{vNMC}, v{vTMP}")
        A(f"v_sub_f32 v{vAL}, v{vTMP}, v{vNMC}\nv_exp_f32 v{vAL}, v{vAL}\nv_mov_b32 v{vNMC}, v{vTMP}")
        A(f"v_mul_f32 v{vL}, v{vL}, v{vAL}")
        for r in range(64):
            A(f"v_mul_f32 v{vO+r}, v{vO+r}, v{vAL}")
        for op in fma_ops(Sc) + exp_ops(): A(op)
        A("s_nop 0")
        for op in sum_ops(): A(op)

    if stamp == 8:
        A(wait_flag_ops(0, 6))
    if stamp == 7:
        A("s_memtime s[66:67]\ns_memrealtime s[64:65]\ns_waitcnt lgkmcnt(0)")
    A(f"s_cmp_eq_u32 s{sWAVE}, 0\ns_cbranch_scc0 K1_LOOP")
    A(f"s_waitcnt vmcnt(0)\nv_mov_b32 v60, 0\nv_mov_b32 v61, 1\ns_mov_b64 exec, 1\nbuffer_store_byte v61, v60, s[24:27], s2 offen sc1\ns_mov_b64 exec, -1")
    A("K1_LOOP:")
    for k in range(8):
        if k == 7:
            A(f"s_cmp_eq_u32 s{sTILE}, 34\ns_cbranch_scc1 K1_LAST")
        iteration(k, k, False)
        if stamp == 8 and k == 0:
            A(f"s_cmp_eq_u32 s{sTILE}, 4\ns_cbranch_scc0 K1_NS8a")
            A("s_memtime s[66:67]\ns_memrealtime s[64:65]\ns_waitcnt lgkmcnt(0)")
            A("K1_NS8a:")
        if stamp == 8 and k == 3:
            A(f"s_cmp_eq_u32 s{sTILE}, 7\ns_cbranch_scc0 K1_NS8")
            A("s_memtime s[68:69]\ns_memrealtime s[76:77]\ns_waitcnt lgkmcnt(0)")
            A("K1_NS8:")
    if stamp == 1:
        for idx, val in ((2, 11), (3, 19), (4, 27)):
            A(f"s_cmp_eq_u32 s{sTILE}, {val}\ns_cbranch_scc0 K1_NS{idx}")
            stamp_at(A, 1, idx)
            A(f"K1_NS{idx}:")
    A("s_branch K1_LOOP")
    A("K1_LAST:")
    iteration(8, 7, True)
    stamp_at(A, stamp in (1, 3, 7), 6)
    if stamp in (3, 7): A("s_memtime s[68:69]\ns_waitcnt lgkmcnt(0)")
    A(f"v_mov_b32 v{vTMP}, v{vL}\ns_nop 1\nv_permlane32_swap_b32 v{vL}, v{vTMP}\nv_add_f32 v{vL}, v{vL}, v{vTMP}")
    A(f"v_rcp_f32 v{vAL}, v{vL}")
    A(f"s_mul_i32 s{sT0}, s{sB}, 6\ns_lshl_b32 s{sT1}, s{sWAVE}, 1\ns_add_u32 s{sT0}, s{sT0}, s{sT1}\ns_lshl_b32 s{sT0}, s{sT0}, 7")
    A(f"s_lshl_b32 s{sT1}, s{sH}, 2\ns_add_u32 s{sT0}, s{sT0}, s{sT1}\ns_lshl_b32 s{sT0}, s{sT0}, 10")
    A("s_nop 7")
    for T in range(4):
        for ip in range(2):
            src = vO + 16 * T + 8 * ip
            d = vKF + 4 * (2 * T + ip)
            for j in range(8):
                A(f"v_mul_f32 v{src+j}, v{src+j}, v{vAL}")
            for j in range(4):
                A(f"v_cvt_pk_bf16_f32 v{d+j}, v{src+2*j}, v{src+2*j+1}")
            A(f"buffer_store_dwordx4 {vr(d,4)}, v{vST}, s[{sWS}:{sWS+3}], s{sT0} offen offset:{T*1024+ip*512} sc1")
    A(f"s_add_u32 s{sWAVE}, s{sWAVE}, 1")
    A("s_branch K1_TAIL")
    for tag in range(9):
        par = tag % 2 if tag < 8 else 1
        A(f"K1_RARE{tag}:")
        A(f"s_call_b64 s[{sT0}:{sT1}], K1_RAREP{par}")
        A(f"s_branch K1_CK{tag}")
    for par in range(2):
        rare(f"P{par}", par)
        A(f"s_setpc_b64 s[{sT0}:{sT1}]")

    A("K1_LOADER:")
    vDKc = 4; vDK = 8; vDX = 12; vDV, vDW = 16, 17
    A("v_mov_b32 v20, 0\nv_mov_b32 v21, 0\nv_mov_b32 v22, 0\nv_mov_b32 v23, 0")
    A(f"ds_write_b128 v{vFL}, v[20:23]\nds_write_b128 v{vFL}, v[20:23] offset:16")
    A("v_xor_b32 v3, v2, v1")
    for n in range(4):
        A(f"v_xor_b32 v{vDKc+n}, {4*n}, v3\nv_lshlrev_b32 v{vDKc+n}, 4, v{vDKc+n}")
        A(f"v_lshl_add_u32 v{vDX+n}, v1, 10, v{vDKc+n}\nv_lshl_add_u32 v{vDK+n}, v1, 8, v{vDKc+n}")
    A("v_lshlrev_b32 v3, 2, v1\nv_xor_b32 v3, v3, v2\nv_lshlrev_b32 v3, 4, v3")
    A(f"v_lshl_add_u32 v{vDV}, v1, 8, v3\nv_lshl_add_u32 v{vDW}, v1, 13, v3")
    A(f"s_lshl_b32 s{sKVOFF}, s{sB}, 5\ns_add_u32 s{sKVOFF}, s{sKVOFF}, s{sH}\ns_lshl_b32 s{sKVOFF}, s{sKVOFF}, 18")
    A(f"s_mul_i32 s{sXG}, s{sB}, {96*1024}\ns_lshl_b32 s{sWQG}, s{sH}, 8")
    A(f"s_mov_b32 s{sSEEN}, 0")
    A("s_waitcnt lgkmcnt(0)")
    srd(A, sWQ, 10, 11, 4 << 20)
    vt = VmTrack(A)
    vLW = 24; vLD = 26; vLF = 28
    def pub(off, val):
        A(f"v_mov_b32 v{vLD}, {val}\nds_write_b32 v{vFL}, v{vLD} offset:{off}")
    def wait_prog(val):
        if val <= 0: return
        lab[0] += 1
        Lb = f"K1_P{lab[0]}"
        A(f"s_cmp_ge_u32 s{sSEEN}, {val}\ns_cbranch_scc1 {Lb}_OK")
        A(f"{Lb}:")
        A(f"ds_read_b96 {vr(vLF,3)}, v{vFL} offset:16\ns_waitcnt lgkmcnt(0)")
        A(f"v_min3_u32 v{vLF}, v{vLF}, v{vLF+1}, v{vLF+2}\ns_nop 0\nv_readfirstlane_b32 s{sSEEN}, v{vLF}")
        A(f"s_cmp_ge_u32 s{sSEEN}, {val}\ns_cbranch_scc0 {Lb}")
        A(f"{Lb}_OK:")
    def piece(name):
        j = int(name[1])
        if name[0] == "x":
            A(f"s_add_u32 s{sT1}, s{sXG}, {j*256}")
            for n in range(24):
                A(f"s_mov_b32 m0, {XB[j%2] + n*1024}")
                if n: A(f"s_add_u32 s{sT1}, s{sT1}, 4096")
                else: A("s_nop 0")
                A(f"buffer_load_dwordx4 v{vDX+n%4}, s[{sX}:{sX+3}], s{sT1} offen lds")
                vt.issue(name)
        else:
            A(f"s_add_u32 s{sT1}, s{sWQG}, {j*64*8192}")
            for n in range(16):
                A(f"s_mov_b32 m0, {WB[j%6][n//8] + (n%8)*1024}")
                if n: A(f"s_add_u32 s{sT1}, s{sT1}, {4*8192}")
                else: A("s_nop 0")
                A(f"buffer_load_dwordx4 v{vDW}, s[{sWQ}:{sWQ+3}], s{sT1} offen lds")
                vt.issue(name)
    qpub = [0]
    def last_idx(tag): return max(i for i, t in enumerate(vt.ops) if t == tag)
    def pub_q():
        k = qpub[0]
        while k < len(SEQ) and SEQ[k] in vt.ops and last_idx(SEQ[k]) <= vt.done: k += 1
        if k > qpub[0]:
            pub(4, k); qpub[0] = k
    def settle(n):
        if len(vt.ops) - 1 - vt.done > n:
            A(f"s_waitcnt vmcnt({n})"); vt.done = len(vt.ops) - 1 - n
        pub_q()
    def parts(u):
        p = []
        if u <= 31: p.append((sK, LK, True, u))
        if u >= 1: p.append((sV, LV, False, u - 1))
        return p
    def dma_unit(u):
        slot = u % 8
        for (srdb, lbase, isk, tile) in parts(u):
            for g in range(2):
                A(f"s_mov_b32 m0, {lbase + slot*8192 + g*4096}\ns_add_u32 s{sT2}, s{sKVOFF}, {tile*8192 + g*4096}")
                for n in range(4):
                    vo = vDK + n if isk else vDV
                    A(f"buffer_load_dwordx4 v{vo}, s[{srdb}:{srdb+3}], s{sT2} offen offset:{n*1024}{NT} lds")
                    vt.issue(("u", u))
    QN = opt.get("qn", 40)
    A("s_barrier")
    srd(A, sK, 6, 7, 64 << 20)
    srd(A, sV, 8, 9, 64 << 20)
    A(f"v_lshlrev_b32 v{vLW}, 4, v0\nv_add_u32 v{vLW+1}, {LV}, v{vLW}")
    def rbuf(u, i):
        f = (u - 1) % 7
        if f < 3:
            b = 32 + f * 64 + 4 * i
            return f"v[{b}:{b+3}]"
        b = (f - 3) * 64 + 4 * i
        return f"a[{b}:{b+3}]"
    def reg_unit(u, pace=None):
        for pi, (srdb, lbase, isk, tile) in enumerate(parts(u)):
            for g in range(2):
                if pace is not None: settle(pace)
                A(f"s_add_u32 s{sT2}, s{sKVOFF}, {tile*8192 + g*4096}")
                for n in range(4):
                    vo = vDK + n if isk else vDV
                    A(f"buffer_load_dwordx4 {rbuf(u, pi*8+g*4+n)}, v{vo}, s[{srdb}:{srdb+3}], s{sT2} offen offset:{n*1024}{NT}")
                    vt.issue(("u", u))
    def dump_unit(u):
        slot = u % 8
        for pi in range(2):
            for i in range(8):
                A(f"ds_write_b128 v{vLW+pi}, {rbuf(u, pi*8+i)} offset:{slot*8192 + i*1024}")
        A("s_waitcnt lgkmcnt(0)")
    def qblock():
        for i, p in enumerate(SEQ):
            if p in PCOND:
                vt.wait(SEQ[need(PCOND[p]) - 1]); pub_q()
                wait_prog(PCOND[p])
            piece(p)
            if i >= 2: settle(QN)
    def kvpre(pace):
        dma_unit(0)
        for u in range(1, 8): reg_unit(u, pace)
    PB = opt.get("paceb", 44)
    W = opt.get("win", 3)
    srd(A, sWS, 18, 19, 256 << 20)
    A(f"s_cmp_eq_u32 s{sGRP}, 1\ns_cbranch_scc1 K1_LB")
    qblock()
    stamp_at(A, stamp in (1, 6), 1)
    upub = [0]
    def pub_u(upto):
        if upto > upub[0]:
            vt.wait(("u", upto - 1)); pub_q(); pub(0, upto); upub[0] = upto
    JOIN = 15
    for u in range(JOIN + W):
        if u < 8:
            c = UCOND[u]
            if c > 0:
                vt.wait(SEQ[need(min(c, 7)) - 1]); pub_q()
        else:
            c = QD + u - 7
        wait_prog(c)
        dma_unit(u)
        if u <= 2:
            k = {0: 6, 1: 7, 2: 8}[u]
            vt.wait(SEQ[k - 1]); pub_q()
        if u >= W: pub_u(u - W + 1)
        if u - W + 1 in (2, 9): stamp_at(A, stamp == 6, {2: 2, 9: 3}[u - W + 1])
    assert upub[0] == JOIN
    A("s_branch K1_LJ")
    A("K1_LB:")
    vt.ops = []; vt.done = -1; qpub[0] = 0
    NPRE = opt.get("npre", 7)
    srd(A, sWO, 12, 13, 4 << 20)
    A(f"s_lshr_b32 s{sT0}, s2, 4\ns_lshl_b32 s{sT0}, s{sT0}, 3\ns_and_b32 s{sT1}, s2, 7\ns_add_u32 s{sT0}, s{sT0}, s{sT1}\ns_lshl_b32 s{sT0}, s{sT0}, 15")
    for n in range(32):
        if n % 4 == 0:
            A(f"s_mov_b32 m0, {8*KB + n*1024}")
            A(f"s_add_u32 s{sT0}, s{sT0}, 4096" if n else "s_nop 0")
        A(f"buffer_load_dwordx4 v{vLW}, s[{sWO}:{sWO+3}], s{sT0} offen offset:{(n%4)*1024} lds")
        vt.issue("wop")
    dma_unit(0)
    for u in range(1, NPRE + 1):
        reg_unit(u, PB)
        if u == 1:
            vt.wait("wop"); pub(28, 1)
    A("K1_TW:")
    A(f"ds_read_b32 v{vLF}, v{vFL} offset:28\ns_waitcnt lgkmcnt(0)\nv_readfirstlane_b32 s{sT3}, v{vLF}")
    A(f"s_cmp_lt_u32 s{sT3}, 2\ns_cbranch_scc1 K1_TW")
    pub(8, 1)
    stamp_at(A, stamp in (1, 6), 1)
    qblock()
    pub(0, 1)
    for u in range(NPRE + 1, 8): reg_unit(u)
    for k in range(qpub[0] + 1, len(SEQ) + 1):
        vt.wait(SEQ[k - 1]); pub_q()
    for u in range(1, JOIN):
        wait_prog(UCOND[u] if u < 8 else QD + u - 7)
        vt.wait(("u", u))
        dump_unit(u)
        pub(0, u + 1)
        if u <= 7: reg_unit(u + 7)
        if u in (1, 8): stamp_at(A, stamp == 6, {1: 2, 8: 3}[u])
        nu = u + W
        if nu >= JOIN:
            wait_prog(QD + nu - 7)
            dma_unit(nu)
    A("K1_LJ:")
    vt.ops = [("u", u) for u in range(JOIN, JOIN + W) for _ in range(16)]; vt.done = -1; qpub[0] = len(SEQ)
    for u in range(JOIN, 33):
        vt.wait(("u", u))
        pub(0, u + 1)
        if u in (15, 20, 26): stamp_at(A, stamp == 6, {15: 4, 20: 5, 26: 6}[u])
        nu = u + W
        if nu <= 32:
            wait_prog(QD + nu - 7)
            dma_unit(nu)
    stamp_at(A, stamp == 1, 5)
    srd(A, 24, 16, 17, 256)
    A(f"v_lshlrev_b32 v21, 2, v0\ns_mov_b32 s91, 0\ns_mov_b32 s{sT0}, 0x01010101")
    A("K1_ALLW:")
    A(f"buffer_load_dword v22, v21, s[24:27], 0 offen sc1\ns_waitcnt vmcnt(0)")
    A(f"v_cmp_ne_u32 vcc, s{sT0}, v22\ns_cbranch_vccz K1_ALLOK")
    A(f"s_sleep 8\ns_add_u32 s91, s91, 1\ns_cmp_lt_u32 s91, 0x40000\ns_cbranch_scc1 K1_ALLW")
    A("K1_ALLOK:")
    A("K1_TAIL:")
    sDBG, sOUT = 24, 28
    sMT, sNT, sBP = 54, 55, 56
    sOA, sWA, sLB = 57, 60, 61
    sF = 80
    sHH = 82
    sFO = 90; sTO = 91
    A("s_waitcnt lgkmcnt(0)\ns_barrier")
    stamp_at(A, stamp == 9, 1)
    srd(A, sWO, 12, 13, 4 << 20)
    srd(A, sDBG, 16, 17, 256)
    srd(A, sOUT, 14, 15, 8*96*512*2)
    A(f"s_and_b32 s{sT0}, s2, 7\ns_lshr_b32 s{sT1}, s2, 3")
    A(f"s_lshr_b32 s{sMT}, s{sT0}, 1\ns_lshl_b32 s{sMT}, s{sMT}, 2\ns_and_b32 s{sT2}, s{sT1}, 3\ns_add_u32 s{sMT}, s{sMT}, s{sT2}")
    A(f"s_and_b32 s{sNT}, s{sT0}, 1\ns_lshl_b32 s{sNT}, s{sNT}, 3\ns_lshr_b32 s{sT2}, s{sT1}, 2\ns_add_u32 s{sNT}, s{sNT}, s{sT2}")
    A(f"s_lshr_b32 s{sBP}, s{sMT}, 1")
    A(f"s_and_b32 s{sT0}, s{sBP}, 1\ns_xor_b32 s{sT1}, s{sT0}, 1")
    for i in range(4):
        A(f"s_add_u32 s{sHH+i}, s{sT0}, {2*i}\ns_add_u32 s{sHH+4+i}, s{sT1}, {2*i}")
    A(f"s_lshl_b32 s{sWA}, s{sWAVE}, 20\ns_lshl_b32 s{sT0}, s{sNT}, 11\ns_add_u32 s{sWA}, s{sWA}, s{sT0}\ns_add_u32 s{sWA}, s{sWA}, {WS_WO}")
    A(f"s_mul_i32 s{sOA}, s{sMT}, {3*131072}\ns_lshl_b32 s{sT0}, s{sWAVE}, 15\ns_add_u32 s{sOA}, s{sOA}, s{sT0}")
    A(f"s_mul_i32 s{sLB}, s{sWAVE}, {36*KB}")
    A(f"s_lshl_b32 s{sFO}, s2, 7\ns_lshl_b32 s{sT0}, s{sWAVE}, 5\ns_add_u32 s{sFO}, s{sFO}, s{sT0}\ns_add_u32 s{sFO}, s{sFO}, {WS_MB}")
    A(f"s_mov_b64 s[{sF}:{sF+1}], 0")
    vWD, vTR, vOL, vZ, vFT = 4, 6, 8, 12, 14
    A("v_lshrrev_b32 v3, 2, v0\nv_and_b32 v19, 3, v0\nv_and_b32 v20, 1, v1\nv_lshlrev_b32 v20, 1, v20\nv_xor_b32 v19, v19, v20\nv_lshlrev_b32 v19, 4, v19")
    A(f"v_lshl_add_u32 v{vWD}, v3, 10, v19")
    A("v_lshrrev_b32 v3, 1, v1\nv_lshlrev_b32 v3, 4, v3\nv_and_b32 v19, 1, v1\nv_lshl_add_u32 v3, v19, 2, v3\nv_lshrrev_b32 v20, 2, v2\nv_add_u32 v3, v3, v20")
    A("v_and_b32 v20, 3, v2\nv_lshlrev_b32 v20, 3, v20\nv_lshl_add_u32 v3, v3, 6, v20")
    A(f"v_add_u32 v3, s{sLB}, v3")
    A(f"v_lshl_add_u32 v{vTR}, v19, 5, v3\nv_xor_b32 v19, 1, v19\nv_lshl_add_u32 v{vTR+1}, v19, 5, v3")
    A(f"v_lshlrev_b32 v{vOL}, 4, v0\nv_add_u32 v{vOL+1}, 0x20000, v{vOL}\nv_add_u32 v{vOL+2}, 0x40000, v{vOL}\nv_mov_b32 v{vZ}, 0")
    A(f"v_and_b32 v{vZ+1}, 7, v0\nv_lshlrev_b32 v{vZ+1}, 2, v{vZ+1}")
    vACC = 32; vOB = 64
    tt = VmTrack(A)
    for _ in range(8): tt.issue("ost")
    def wo_load(slot):
        A(f"s_lshl_b32 s{sT1}, s{sHH+slot}, 17\ns_add_u32 s{sT1}, s{sT1}, s{sWA}")
        for ks in range(4):
            for ci in range(2):
                r = slot * 32 + ks * 8 + ci * 4
                A(f"buffer_load_dwordx4 a[{r}:{r+3}], v{vOL}, s[{sWS}:{sWS+3}], s{sT1} offen offset:{ci*1024} sc1")
                tt.issue(("w", slot))
            if ks < 3: A(f"s_add_u32 s{sT1}, s{sT1}, 32768")
    def flag_wait(slot):
        lab[0] += 1
        Lb = f"K1_F{lab[0]}"
        A(f"s_bitcmp1_b32 s{sF}, s{sHH+slot}\ns_cbranch_scc1 {Lb}_OK")
        A(f"s_mov_b32 s{sTO}, 0")
        A(f"{Lb}:")
        A(f"buffer_load_dword v{vFT}, v{vZ+1}, s[{sWS}:{sWS+3}], s{sFO} offen sc1\ns_waitcnt vmcnt(0)")
        A(f"v_cmp_ne_u32 vcc, 0, v{vFT}\ns_nop 1\ns_mov_b32 s{sF}, vcc_lo")
        A(f"s_bitcmp1_b32 s{sF}, s{sHH+slot}\ns_cbranch_scc1 {Lb}_OK")
        A(f"s_sleep {opt.get('psleep', 4)}\ns_add_u32 s{sTO}, s{sTO}, 1\ns_cmp_lt_u32 s{sTO}, 0x40000\ns_cbranch_scc1 {Lb}")
        A(f"{Lb}_OK:")
    def o_load(slot):
        flag_wait(slot)
        A(f"s_lshl_b32 s{sT1}, s{sHH+slot}, 12\ns_add_u32 s{sT1}, s{sT1}, s{sOA}")
        base = vOB + (slot % 4) * 48
        for ks in range(4):
            for qi in range(3):
                A(f"buffer_load_dwordx4 {vr(base+ks*12+qi*4,4)}, v{vOL+qi}, s[{sWS}:{sWS+3}], s{sT1} offen offset:{ks*1024} sc1")
                tt.issue(("o", slot))
    def o_mma(slot):
        base = vOB + (slot % 4) * 48
        for ks in range(4):
            for qi in range(3):
                for ci in range(2):
                    t = vACC + 4 * (qi * 2 + ci)
                    r = slot * 32 + ks * 8 + ci * 4
                    c = "0" if (slot == 0 and ks == 0) else vr(t, 4)
                    A(f"v_mfma_f32_16x16x32_bf16 {vr(t,4)}, a[{r}:{r+3}], {vr(base+ks*12+qi*4,4)}, {c}")
    for sl in range(4): wo_load(sl)
    A(f"s_cmp_eq_u32 s{sWAVE}, 0\ns_cbranch_scc1 K1_NOPUB")
    tt.wait("ost")
    A(f"v_mov_b32 v16, 1\ns_mov_b64 exec, 1\nds_add_rtn_u32 v17, v{vFL}, v16 offset:12\ns_waitcnt lgkmcnt(0)\ns_mov_b64 exec, -1")
    A(f"v_readfirstlane_b32 s{sT0}, v17\ns_cmp_eq_u32 s{sT0}, 2\ns_cbranch_scc0 K1_NOPUB2")
    A(f"s_and_b32 s{sT0}, s{sB}, 6\ns_and_b32 s{sT1}, s{sB}, 1\ns_lshl_b32 s{sT1}, s{sT1}, 4\ns_add_u32 s{sT0}, s{sT0}, s{sT1}")
    A("v_and_b32 v19, 31, v0\nv_and_b32 v20, 1, v19\nv_lshrrev_b32 v21, 2, v19\nv_lshl_add_u32 v20, v21, 5, v20\nv_bfe_u32 v21, v19, 1, 1\nv_lshl_add_u32 v20, v21, 3, v20")
    A(f"v_add_u32 v20, s{sT0}, v20")
    A(f"v_lshlrev_b32 v20, 7, v20\ns_lshl_b32 s{sT0}, s{sH}, 2\ns_add_u32 s{sT0}, s{sT0}, {WS_MB}\nv_mov_b32 v16, 1")
    A(f"buffer_store_dword v16, v20, s[{sWS}:{sWS+3}], s{sT0} offen sc1")
    A("K1_NOPUB2:")
    A("K1_NOPUB:")
    tt.done = -1
    stamp_at(A, stamp == 9, 2)
    o_load(0); o_load(1); o_load(2)
    stamp_at(A, stamp == 9, 3)
    for sl in range(8):
        if sl + 4 < 8: wo_load(sl + 4)
        if sl + 3 < 8: o_load(sl + 3)
        tt.wait(("o", sl)); tt.wait(("w", sl)); o_mma(sl)
    stamp_at(A, stamp == 9, 4)
    A("s_nop 7\ns_nop 3")
    A(f"v_add_u32 v5, s{sLB}, v{vOL}")
    for t in range(6):
        A(f"ds_write_b128 v5, {vr(vACC+4*t,4)} offset:{t*1024}")
    A("s_waitcnt lgkmcnt(0)\ns_barrier")
    A("v_and_b32 v6, 15, v0\nv_lshlrev_b32 v6, 10, v6\nv_lshl_add_u32 v6, v1, 3, v6")
    for rep in range(2):
        if rep == 1: A(f"s_cmp_ge_u32 s{sWAVE}, 2\ns_cbranch_scc1 K1_FIN\ns_add_u32 s{sWAVE}, s{sWAVE}, 4")
        A(f"s_lshl_b32 s{sT0}, s{sWAVE}, 10\nv_add_u32 v5, s{sT0}, v{vOL}")
        A(f"v_add_u32 v7, {72*KB}, v5")
        b = 64 + 16 * rep
        A(f"ds_read_b128 {vr(b,4)}, v5\nds_read_b128 {vr(b+4,4)}, v5 offset:{36*KB}\nds_read_b128 {vr(b+8,4)}, v7\nds_read_b128 {vr(b+12,4)}, v7 offset:{36*KB}")
        A("s_waitcnt lgkmcnt(0)")
        for r in range(4):
            A(f"v_add_f32 v{b+r}, v{b+r}, v{b+4+r}\nv_add_f32 v{b+8+r}, v{b+8+r}, v{b+12+r}")
        for r in range(4):
            A(f"v_add_f32 v{b+r}, v{b+r}, v{b+8+r}")
        A(f"v_cvt_pk_bf16_f32 v{b}, v{b}, v{b+1}\nv_cvt_pk_bf16_f32 v{b+1}, v{b+2}, v{b+3}")
        A(f"s_lshr_b32 s{sT0}, s{sWAVE}, 1\ns_lshl_b32 s{sT0}, s{sT0}, 4\ns_mul_i32 s{sT1}, s{sMT}, 48\ns_add_u32 s{sT0}, s{sT0}, s{sT1}\ns_lshl_b32 s{sT0}, s{sT0}, 10")
        A(f"s_and_b32 s{sT1}, s{sWAVE}, 1\ns_lshl_b32 s{sT1}, s{sT1}, 5\ns_add_u32 s{sT0}, s{sT0}, s{sT1}\ns_lshl_b32 s{sT1}, s{sNT}, 6\ns_add_u32 s{sT0}, s{sT0}, s{sT1}")
        A(f"buffer_store_dwordx2 {vr(b,2)}, v6, s[{sOUT}:{sOUT+3}], s{sT0} offen")
    A(f"s_sub_u32 s{sWAVE}, s{sWAVE}, 4")
    A("K1_FIN:")
    if stamp:
        stamp_store(A, sWS, sT0, f"s_lshl_b32 s{sT0}, s2, 2\ns_add_u32 s{sT0}, s{sT0}, s{sWAVE}", WS_STAMP)
    A("K1_END:\ns_endpgm")

def main(stamp=0, opt=None):
    A = Asm()
    A.raw(f"; @launch grid=(256,1,1) block=(256,1,1) lds={LDS_BYTES}")
    A.raw('.amdgcn_target "amdgcn-amd-amdhsa--gfx950"\n.text')
    A.raw(".globl standalone__gqa_block_cached__near_ridge_kernel\n.type standalone__gqa_block_cached__near_ridge_kernel,@function")
    gen_k1(A, stamp, opt)
    A.raw('.section .rodata,"a"')
    A.raw(kd("standalone__gqa_block_cached__near_ridge_kernel", 512, 256))
    return A.text()

if __name__ == "__main__":
    stamp = 1 if "--stamp" in sys.argv else (2 if "--stamp2" in sys.argv else (3 if "--stamp3" in sys.argv else (4 if "--stamp4" in sys.argv else (5 if "--stamp5" in sys.argv else (6 if "--stamp6" in sys.argv else (7 if "--stamp7" in sys.argv else (8 if "--stamp8" in sys.argv else (9 if "--stamp9" in sys.argv else 0))))))))
    opt = {}
    for a in sys.argv[1:]:
        if a.startswith("--") and "=" in a:
            k, v = a[2:].split("="); opt[k] = int(v)
    out = [a for a in sys.argv[1:] if not a.startswith("--")][0]
    open(out, "w").write(main(stamp, opt))
```

```python
import sys, struct
from gen1 import Asm, vr, f32bits, srd, VmTrack, stamp_at, stamp_store, kd, WS_STAMP, SCALE_LOG2E, THRESH

KN = "standalone__gqa_block_cached__near_ridge_kernel"
KB = 1024
LK = 0
LV = 64 * KB
WB = [(128*KB, 136*KB), (144*KB, 64*KB), (8*KB, 16*KB), (72*KB, 80*KB), (24*KB, 32*KB), (88*KB, 96*KB)]
XB = [40 * KB, 104 * KB]
FL = 152 * KB
LDS_BYTES = 160 * KB
WS_O = 0
WS_MB = 7 << 20
WS_P = 32 << 20
QD = 8
NT = " nt"
SEQ = [f"w{i}" for i in range(8)]
PCOND = {"w6": 1, "w7": 2}
def need(hc): return hc + 1
UCOND = {0: 0, 1: 4, 2: 4, 3: 6, 4: 6, 5: 6, 6: 6, 7: 6}
TMO = 0x40000

def gen(A, stamp=0, opt=None):
    opt = opt or {}
    sX, sK, sV, sWQ, sWO, sWS = 20, 24, 28, 32, 36, 40
    sDBG, sOUT = 24, 28
    sWAVE, sB, sH = 44, 45, 46
    sKVOFF = 47
    sT0, sT1, sT2, sT3 = 48, 49, 50, 51
    sC, sTHR = 52, 53
    sXG = 54; sWQG = 55
    sTILE = 58; sSEEN = 59
    sGRP = 62
    sXC, sHQ = 80, 81
    sF, sP, sI, sMB, sTO, sLB, sOB = 82, 83, 84, 85, 86, 87, 88
    lab = [0]
    def newlab(p):
        lab[0] += 1
        return f"K1_{p}{lab[0]}"
    A.raw(f".p2align 8\n{KN}:")
    A("s_cmp_ge_u32 s2, 256\ns_cbranch_scc1 K1_END")
    if stamp:
        for i in range(8): A(f"s_mov_b64 s[{64+2*i}:{65+2*i}], 0")
    stamp_at(A, stamp, 0)
    A("s_load_dwordx16 s[4:19], s[0:1], 0")
    A("v_lshrrev_b32 v1, 6, v0\nv_and_b32 v0, 63, v0\ns_nop 0")
    A(f"v_readfirstlane_b32 s{sWAVE}, v1")
    A(f"s_and_b32 s{sXC}, s2, 7\ns_lshr_b32 s{sT1}, s2, 3\ns_and_b32 s{sHQ}, s{sT1}, 3")
    A(f"s_lshl_b32 s{sH}, s{sXC}, 2\ns_add_u32 s{sH}, s{sH}, s{sHQ}\ns_lshr_b32 s{sB}, s{sT1}, 2")
    A(f"s_add_u32 s{sGRP}, s{sB}, s{sH}\ns_and_b32 s{sGRP}, s{sGRP}, 1")
    A(f"s_lshl_b32 s{sMB}, s2, 7\ns_add_u32 s{sMB}, s{sMB}, {WS_MB}")
    A("v_lshrrev_b32 v1, 4, v0\nv_and_b32 v2, 15, v0")
    vFL = 18
    A(f"v_mov_b32 v{vFL}, {FL}")
    A(f"s_cmp_eq_u32 s{sWAVE}, 0\ns_cbranch_scc1 K1_LOADER")

    A(f"s_sub_u32 s{sWAVE}, s{sWAVE}, 1")
    vDX = 64
    A("v_xor_b32 v3, v2, v1")
    for n in range(4):
        A(f"v_xor_b32 v{vDX+n}, {4*n}, v3\nv_lshlrev_b32 v{vDX+n}, 4, v{vDX+n}\nv_lshl_add_u32 v{vDX+n}, v1, 10, v{vDX+n}")
    A(f"s_mul_i32 s{sXG}, s{sB}, 96\ns_lshl_b32 s{sT0}, s{sWAVE}, 5\ns_add_u32 s{sXG}, s{sXG}, s{sT0}\ns_lshl_b32 s{sXG}, s{sXG}, 10")
    A(f"s_lshl_b32 s56, s{sWAVE}, 13")
    A("s_waitcnt lgkmcnt(0)\ns_barrier")
    srd(A, sX, 4, 5, 8*96*512*2)
    srd(A, sWS, 18, 19, 256 << 20)
    srd(A, sDBG, 16, 17, 256)
    srd(A, sOUT, 14, 15, 8*96*512*2)
    A("v_and_b32 v70, 31, v0\nv_lshlrev_b32 v70, 2, v70\nv_mov_b32 v71, 0")
    A(f"s_cmp_eq_u32 s{sWAVE}, 0\ns_cbranch_scc0 K1_NOCLR")
    A(f"buffer_store_dword v71, v70, s[{sWS}:{sWS+3}], s{sMB} offen sc1")
    A("K1_NOCLR:")
    A(f"s_cmp_eq_u32 s{sGRP}, 0\ns_cbranch_scc1 K1_QGO")
    A("K1_QW:")
    A(f"s_sleep 2\nds_read_b32 v58, v{vFL} offset:8\ns_waitcnt lgkmcnt(0)\nv_readfirstlane_b32 s{sT3}, v58")
    A(f"s_cmp_eq_u32 s{sT3}, 0\ns_cbranch_scc1 K1_QW")
    A("K1_QGO:")
    vtc = VmTrack(A)
    def xops(j):
        ops = []
        for n in range(8):
            pre = f"s_add_u32 s57, s{sXG}, {j*256 + n*4096}\ns_add_u32 s60, s56, {XB[j%2] + n*1024}\ns_mov_b32 m0, s60\ns_nop 0\n"
            ops.append(pre + f"buffer_load_dwordx4 v{vDX+n%4}, s[{sX}:{sX+3}], s57 offen lds")
        return ops
    for j in range(2):
        for op in xops(j):
            A(op); vtc.issue(j)
    vKA = 20; vVA = 28
    vNMC, vL, vTS, vTMP, vTMP2, vAL = 48, 49, 50, 51, 52, 53
    vL16 = 54; vPG = 55; vPA = 56
    vF0 = 58
    vQ = 64; vO = 96
    vXA = [32, 40]
    vWA = [4, 8, 12]
    vS = [160, 176]
    vP = 192; vPK = 208; vKF = 216
    aVF = 0
    A(f"s_mov_b32 s{sC}, {hex(f32bits(SCALE_LOG2E))}\ns_mov_b32 s{sTHR}, {hex(f32bits(THRESH))}")
    A("v_and_b32 v3, 31, v0\nv_lshrrev_b32 v19, 5, v0")
    A("v_and_b32 v60, 15, v3\nv_xor_b32 v60, v60, v19\nv_lshlrev_b32 v60, 4, v60")
    A(f"v_lshl_add_u32 v{vKA}, v3, 8, v60")
    for s in range(1, 8):
        A(f"v_xor_b32 v{vKA+s}, {32*s}, v{vKA}")
    A(f"s_add_u32 s{sT1}, s56, {XB[1]}\ns_add_u32 s{sT0}, s56, {XB[0]}")
    for s in range(8):
        A(f"v_add_u32 v{vXA[0]+s}, s{sT0}, v{vKA+s}\nv_add_u32 v{vXA[1]+s}, s{sT1}, v{vKA+s}")
    A("v_lshrrev_b32 v60, 2, v2")
    A("v_and_b32 v61, 1, v1\nv_lshlrev_b32 v61, 5, v61")
    A("v_and_b32 v62, 3, v2\nv_lshlrev_b32 v62, 3, v62")
    A("v_add_u32 v61, v61, v62")
    for T in range(4):
        A(f"v_xor_b32 v62, {T}, v60\nv_lshl_add_u32 v62, v62, 6, v61")
        A(f"v_lshl_add_u32 v63, v19, 2, v60\nv_lshl_add_u32 v{vVA+T}, v63, 8, v62")
        A(f"v_add_u32 v{vVA+T}, {LV}, v{vVA+T}")
        A(f"v_lshl_add_u32 v63, v19, 3, v60\nv_lshl_add_u32 v{vWA[0]+T}, v63, 8, v62")
        A(f"v_add_u32 v{vWA[1]+T}, {64*KB}, v{vWA[0]+T}\nv_add_u32 v{vWA[2]+T}, {128*KB}, v{vWA[0]+T}")
    A(f"v_lshlrev_b32 v{vL16}, 4, v0")
    A(f"s_lshl_b32 s{sT0}, s{sWAVE}, 2\ns_add_u32 s{sT0}, s{sT0}, {FL+16}\nv_mov_b32 v{vPA}, s{sT0}")
    A(f"s_mov_b32 s{sSEEN}, 0")

    def wait_flag_ops(off, val):
        L = newlab("L")
        return "\n".join([
            f"s_cmp_ge_u32 s{sSEEN}, {val}\ns_cbranch_scc1 {L}_OK",
            f"{L}:",
            f"ds_read_b32 v{vF0}, v{vFL} offset:{off}\ns_waitcnt lgkmcnt(0)\nv_readfirstlane_b32 s{sSEEN}, v{vF0}",
            f"s_cmp_ge_u32 s{sSEEN}, {val}\ns_cbranch_scc0 {L}",
            f"{L}_OK:"])

    AB = [vS[0], vS[1], vP]
    lops = []
    def L(op, tag):
        A(op); lops.append(tag)
    def lwait(tag):
        idx = max(i for i, t in enumerate(lops) if t == tag)
        A(f"s_waitcnt lgkmcnt({min(15, len(lops) - 1 - idx)})")
    def rd(g):
        hc, s4 = g // 4, g % 4
        base = AB[g % 3]
        wb = WB[hc % 6][s4 // 2] + (s4 % 2) * 16 * 256
        reg = vWA[wb // (64*KB)]; off = wb % (64*KB)
        return [f"ds_read_b64_tr_b16 {vr(base+4*T+2*t,2)}, v{reg+T} offset:{off + 4*t*256}" for T in range(4) for t in range(2)]
    aX = 32
    def xrd(j): return [f"ds_read_b128 a[{aX+32*j+4*s}:{aX+32*j+4*s+3}], v{vXA[j%2]+s}" for s in range(8)]
    vtc.wait(0)
    for op in xrd(0): A(op)
    vtc.wait(1)
    for op in xrd(1): A(op)
    A("s_waitcnt lgkmcnt(0)")
    for j in (2, 3):
        for op in xops(j):
            A(op); vtc.issue(j)
    A(wait_flag_ops(4, need(0)))
    xq = []
    for op in rd(0): L(op, 0)
    for op in rd(1): L(op, 1)
    for g in range(32):
        lwait(g)
        if g % 4 == 3:
            A(f"v_mov_b32 v{vPG}, {g//4+1}")
            L(f"ds_write_b32 v{vPA}, v{vPG}", "p")
        if g == 9:
            vtc.wait(3); xq += xrd(2) + xrd(3)
            A(f"s_cmp_eq_u32 s{sWAVE}, 0\ns_cbranch_scc0 K1_NORDY")
            A(f"v_mov_b32 v70, 0\nv_mov_b32 v71, 1\ns_mov_b64 exec, 1\nbuffer_store_byte v71, v70, s[{sDBG}:{sDBG+3}], s2 offen sc1\ns_mov_b64 exec, -1")
            A("K1_NORDY:")
        base = AB[g % 3]
        nx = rd(g + 2) if g + 2 < 32 else []
        for T in range(4):
            c = "0" if g == 0 else vr(vO+16*T,16)
            A(f"v_mfma_f32_32x32x16_bf16 {vr(vO+16*T,16)}, {vr(base+4*T,4)}, a[{aX+4*g}:{aX+4*g+3}], {c}")
            if T == 0 and nx and (g + 2) % 4 == 0:
                A(wait_flag_ops(4, need((g + 2) // 4)))
            for op in nx[2*T:2*T+2]: L(op, g + 2)
            if xq: L(xq.pop(0), "x")
    stamp_at(A, stamp == 1, 1)
    A(f"s_mov_b32 s{sSEEN}, 0\ns_mov_b32 s{sTILE}, 1")
    def wait_landed_ops():
        return wait_flag_ops(0, f"s{sTILE}") + f"\ns_add_u32 s{sTILE}, s{sTILE}, 1"
    def kreads(slot):
        return [f"ds_read_b128 {vr(vKF+4*s,4)}, v{vKA+s} offset:{LK+slot*8192}" for s in range(8)]
    A(wait_landed_ops())
    for op in kreads(0): A(op)
    A("s_nop 7")
    for s in range(8):
        T, hh = s // 2, s % 2
        src = vO + 16 * T + 8 * hh
        d = vQ + 4 * s
        for j in range(4):
            A(f"v_cvt_pk_bf16_f32 v{d+j}, v{src+2*j}, v{src+2*j+1}")
        A("s_nop 1")
        A(f"v_permlane32_swap_b32 v{d}, v{d+2}")
        A(f"v_permlane32_swap_b32 v{d+1}, v{d+3}")

    def consumed():
        A(f"v_add_u32 v{vPG}, 1, v{vPG}\nds_write_b32 v{vPA}, v{vPG}")
    NE1 = 10
    def fma_ops(Sc): return [f"v_fma_f32 v{vP+r}, v{Sc+r}, s{sC}, v{vNMC}" for r in range(16)]
    def exp_ops(): return [f"v_exp_f32 v{vP+r}, v{vP+r}" for r in range(16)]
    def sum_ops():
        ops = [f"v_add_f32 v{vTS}, v{vP}, v{vP+1}", f"v_add_f32 v{vTMP}, v{vP+2}, v{vP+3}"]
        for r in range(4, 16, 2):
            ops += [f"v_add_f32 v{vTS}, v{vTS}, v{vP+r}", f"v_add_f32 v{vTMP}, v{vTMP}, v{vP+r+1}"]
        ops.append(f"v_add_f32 v{vTS}, v{vTS}, v{vTMP}")
        return ops
    def part1(Sc):
        fm, ex = fma_ops(Sc), exp_ops()[:NE1]
        seq = fm[:4]; rest = fm[4:]
        for i in range(max(len(rest), len(ex))):
            if i < len(ex): seq.append(ex[i])
            if i < len(rest): seq.append(rest[i])
        return seq
    def cost(op):
        if op.startswith("v_exp"): return 8
        if op.startswith("ds_"): return 8
        return 4 * (op.count("\n") + 1) if not op.startswith("s_cmp") else 12
    def interleave(mfmas, fillers):
        tot = sum(cost(o) for o in fillers)
        n = len(mfmas)
        if n == 0:
            for op in fillers: A(op)
            return
        acc = 0; k = 0
        for i, m in enumerate(mfmas):
            A(m)
            tgt = tot * (i + 1) / n
            while k < len(fillers) and (acc + cost(fillers[k]) / 2 <= tgt or i == n - 1):
                A(fillers[k]); acc += cost(fillers[k]); k += 1
    def qk(Sn):
        return [f"v_mfma_f32_32x32x16_bf16 {vr(Sn,16)}, {vr(vKF+4*s,4)}, {vr(vQ+4*s,4)}, {'0' if s == 0 else vr(Sn,16)}" for s in range(8)]

    A("s_waitcnt lgkmcnt(0)")
    z = [f"v_mov_b32 v{vO+r}, 0" for r in range(64)] + [f"v_mov_b32 v{vNMC}, 0x7f800000", f"v_mov_b32 v{vL}, 0"]
    interleave(qk(vS[0]), z)
    consumed()
    A(wait_landed_ops())
    for op in kreads(1): A(op)
    A("s_nop 7")
    for op in part1(vS[0]): A(op)

    def iteration(tag, k, last):
        par = k % 2
        Sc, Sn = vS[par], vS[par ^ 1]
        vslot = (k + 1) % 8
        A("s_waitcnt lgkmcnt(0)")
        vrd = [f"ds_read_b64_tr_b16 a[{aVF+16*u+4*T+2*t}:{aVF+16*u+4*T+2*t+1}], v{vVA+T} offset:{vslot*8192+(16*u+8*t)*256}"
               for u in range(2) for T in range(4) for t in range(2)]
        ex = exp_ops()[NE1:]
        f = []
        rest = ex + ["s_nop 0"] + sum_ops()
        ri = 0
        for i in range(16):
            f.append(vrd[i])
            if i % 2 == 1:
                take = 1 if ri < len(ex) else 3
                f += rest[ri:ri+take]; ri += take
        f += rest[ri:]
        f.append(f"v_cmp_nge_f32 vcc, s{sTHR}, v{vTS}\ns_cbranch_vccnz K1_RARE{tag}\nK1_CK{tag}:")
        f.append(f"v_add_f32 v{vL}, v{vL}, v{vTS}")
        f += [f"v_cvt_pk_bf16_f32 v{vPK+j}, v{vP+2*j}, v{vP+2*j+1}" for j in range(8)]
        interleave([] if last else qk(Sn), f)
        A("s_waitcnt lgkmcnt(0)")
        if not last: consumed()
        else: A("s_nop 0")
        pv = [f"v_mfma_f32_32x32x16_bf16 {vr(vO+16*T,16)}, a[{aVF+16*u+4*T}:{aVF+16*u+4*T+3}], {vr(vPK+4*u,4)}, {vr(vO+16*T,16)}"
              for u in range(2) for T in range(4)]
        if last:
            A("s_nop 0")
            for m in pv: A(m)
            return
        p1 = part1(Sn)
        h = 10
        kr = kreads((k + 2) % 8)
        tail = []
        r2 = p1[h:]
        for i in range(8):
            tail.append(kr[i])
            if i % 2 == 1: tail += r2[:2]; r2 = r2[2:]
        tail += r2
        f = ["s_nop 3"] + p1[:h] + [wait_landed_ops()] + tail
        interleave(pv, f)

    def rare(par):
        Sc = vS[par]
        A(f"K1_RAREP{par}:")
        A(f"v_max3_f32 v{vTMP}, v{Sc}, v{Sc+1}, v{Sc+2}")
        for r in range(3, 15, 2):
            A(f"v_max3_f32 v{vTMP}, v{vTMP}, v{Sc+r}, v{Sc+r+1}")
        A(f"v_max_f32 v{vTMP}, v{vTMP}, v{Sc+15}")
        A(f"v_mov_b32 v{vTMP2}, v{vTMP}\ns_nop 1\nv_permlane32_swap_b32 v{vTMP}, v{vTMP2}\nv_max_f32 v{vTMP}, v{vTMP}, v{vTMP2}")
        A(f"v_mul_f32 v{vTMP}, s{sC}, v{vTMP}")
        A(f"v_sub_f32 v{vTMP}, 0, v{vTMP}\nv_min_f32 v{vTMP}, v{vNMC}, v{vTMP}")
        A(f"v_sub_f32 v{vAL}, v{vTMP}, v{vNMC}\nv_exp_f32 v{vAL}, v{vAL}\nv_mov_b32 v{vNMC}, v{vTMP}")
        A(f"v_mul_f32 v{vL}, v{vL}, v{vAL}")
        for r in range(64):
            A(f"v_mul_f32 v{vO+r}, v{vO+r}, v{vAL}")
        for op in fma_ops(Sc) + exp_ops(): A(op)
        A("s_nop 0")
        for op in sum_ops(): A(op)
        A(f"s_setpc_b64 s[{sT0}:{sT1}]")

    A("K1_LOOP:")
    for k in range(8):
        if k == 7:
            A(f"s_cmp_eq_u32 s{sTILE}, 34\ns_cbranch_scc1 K1_LAST")
        iteration(k, k, False)
    if stamp == 1:
        for idx, val in ((2, 11), (3, 19), (4, 27)):
            A(f"s_cmp_eq_u32 s{sTILE}, {val}\ns_cbranch_scc0 K1_NS{idx}")
            stamp_at(A, 1, idx)
            A(f"K1_NS{idx}:")
    A("s_branch K1_LOOP")
    A("K1_LAST:")
    iteration(8, 7, True)
    A(f"v_mov_b32 v{vTMP}, v{vL}\ns_nop 1\nv_permlane32_swap_b32 v{vL}, v{vTMP}\nv_add_f32 v{vL}, v{vL}, v{vTMP}")
    A(f"v_rcp_f32 v{vAL}, v{vL}")
    A(f"s_lshl_b32 s{sOB}, s{sB}, 5\ns_lshl_b32 s{sT0}, s{sXC}, 2\ns_add_u32 s{sOB}, s{sOB}, s{sT0}\ns_mul_i32 s{sOB}, s{sOB}, 24576\ns_add_u32 s{sOB}, s{sOB}, s56")
    A(f"s_mul_i32 s{sT0}, s{sHQ}, 24576\ns_add_u32 s{sT0}, s{sT0}, s{sOB}\ns_add_u32 s{sT1}, s{sT0}, 4096")
    A("s_nop 3")
    A(f"s_lshl_b32 s{sP}, 1, s{sHQ}\ns_xor_b32 s{sP}, s{sP}, 15")
    stamp_at(A, stamp in (1,), 6)
    stamp_at(A, stamp in (9, 10), 1)
    tt = VmTrack(A)
    for T in range(4):
        for ip in range(2):
            src = vO + 16 * T + 8 * ip
            blk = 2 * T + ip
            d = vKF + 4 * blk
            for j in range(8):
                A(f"v_mul_f32 v{src+j}, v{src+j}, v{vAL}")
            for j in range(4):
                A(f"v_cvt_pk_bf16_f32 v{d+j}, v{src+2*j}, v{src+2*j+1}")
            A(f"buffer_store_dwordx4 {vr(d,4)}, v{vL16}, s[{sWS}:{sWS+3}], s{sT0 if blk < 4 else sT1} offen offset:{(blk%4)*1024} sc1")
            tt.issue("ost")
    A("s_barrier")
    A(f"s_mov_b32 s{sSEEN}, 0")
    vTA = 4
    vZ = 8; vFT = 9; vM1 = 10; vM2 = 11; vONE = 12
    A(f"v_and_b32 v{vM1}, 3, v0\nv_lshlrev_b32 v{vM1}, 2, v{vM1}\nv_and_b32 v{vM2}, 7, v0\nv_lshlrev_b32 v{vM2}, 2, v{vM2}\nv_add_u32 v{vM2}, 32, v{vM2}\nv_mov_b32 v{vONE}, 1")

    def publish(cnt_off, which, sfx):
        A(f"s_mov_b64 exec, 1\nds_add_rtn_u32 v17, v{vFL}, v{vONE} offset:{cnt_off}\ns_waitcnt lgkmcnt(0)\ns_mov_b64 exec, -1")
        A(f"v_readfirstlane_b32 s{sT0}, v17\ns_cmp_eq_u32 s{sT0}, 2\ns_cbranch_scc0 K1_NP{sfx}")
        if which == 1:
            A(f"v_and_b32 v16, 3, v0\nv_lshlrev_b32 v16, 10, v16")
            A(f"s_lshl_b32 s{sT0}, s{sB}, 5\ns_add_u32 s{sT0}, s{sT0}, s{sXC}\ns_lshl_b32 s{sT0}, s{sT0}, 7\ns_lshl_b32 s{sT1}, s{sHQ}, 2\ns_add_u32 s{sT0}, s{sT0}, s{sT1}\ns_add_u32 s{sT0}, s{sT0}, {WS_MB}")
        else:
            A(f"v_and_b32 v16, 7, v0\nv_lshlrev_b32 v16, 7, v16")
            A(f"s_andn2_b32 s{sT0}, s2, 7\ns_lshl_b32 s{sT0}, s{sT0}, 7\ns_lshl_b32 s{sT1}, s{sXC}, 2\ns_add_u32 s{sT0}, s{sT0}, s{sT1}\ns_add_u32 s{sT0}, s{sT0}, {WS_MB + 32}")
        A(f"buffer_store_dword v{vONE}, v16, s[{sWS}:{sWS+3}], s{sT0} offen sc1")
        A(f"K1_NP{sfx}:")

    def peer_load(areg, tag):
        A(f"s_mul_i32 s{sT0}, s{sI}, 24576\ns_add_u32 s{sT0}, s{sT0}, s{sOB}\ns_add_u32 s{sT1}, s{sT0}, 4096")
        for blk in range(8):
            A(f"buffer_load_dwordx4 a[{areg+4*blk}:{areg+4*blk+3}], v{vL16}, s[{sWS}:{sWS+3}], s{sT0 if blk < 4 else sT1} offen offset:{(blk%4)*1024} sc1")
            tt.issue(tag)

    def stage(bfrag, first, w0, w4, pre=None):
        for T in range(4):
            A(f"v_add_u32 v{vTA+T}, s{sLB}, v{vVA+T}")
        lo = []
        def LL(op, tag): A(op); lo.append(tag)
        def lw(tag):
            idx = max(i for i, t in enumerate(lo) if t == tag)
            A(f"s_waitcnt lgkmcnt({min(15, len(lo) - 1 - idx)})")
        def r2(s): return [f"ds_read_b64_tr_b16 {vr(AB[s%3]+4*T+2*t,2)}, v{vTA+T} offset:{(16*s+8*t)*256}" for T in range(4) for t in range(2)]
        A(wait_flag_ops(36, w0))
        for op in r2(0): LL(op, 0)
        for op in r2(1): LL(op, 1)
        if pre: pre()
        for s in range(8):
            lw(s)
            nx = r2(s + 2) if s + 2 < 8 else []
            for T in range(4):
                c = "0" if (first and s == 0) else vr(vO+16*T,16)
                A(f"v_mfma_f32_32x32x16_bf16 {vr(vO+16*T,16)}, {vr(AB[s%3]+4*T,4)}, {bfrag(s)}, {c}")
                if T == 0 and s == 2 and w4 > w0: A(wait_flag_ops(36, w4))
                for op in nx[2*T:2*T+2]: LL(op, s + 2)

    own = lambda s: vr(vKF + 4 * s, 4)
    def set_lb(slot): A(f"s_mov_b32 s{sLB}, {slot*32*KB - LV}")
    sN = 89; sLBK = 90
    def read_mask():
        A(f"ds_read_b32 v{vF0}, v{vFL} offset:32\ns_waitcnt lgkmcnt(0)\nv_readfirstlane_b32 s{sF}, v{vF0}")
    def issue_peer(k):
        A(f"s_ff1_i32_b32 s{sI}, s{sT2}\ns_bitset0_b32 s{sP}, s{sI}")
        peer_load(32 * k, "p")
        A(f"s_sub_u32 s{sLBK+k}, s{sI}, s{sHQ}\ns_and_b32 s{sLBK+k}, s{sLBK+k}, 3\ns_lshl_b32 s{sLBK+k}, s{sLBK+k}, 15\ns_sub_u32 s{sLBK+k}, s{sLBK+k}, {LV}")
        A(f"s_mov_b32 s{sN}, {k+1}")
    def try_peer(k):
        Lb = newlab("T")
        A(f"s_cmp_eq_u32 s{sN}, {k}\ns_cbranch_scc0 {Lb}")
        A(f"s_and_b32 s{sT2}, s{sF}, s{sP}\ns_cbranch_scc0 {Lb}")
        issue_peer(k)
        A(f"{Lb}:")
    def block_peer(k):
        Lb = newlab("B")
        A(f"s_cmp_gt_u32 s{sN}, {k}\ns_cbranch_scc1 {Lb}_OK")
        A(f"{Lb}:")
        read_mask()
        A(f"s_and_b32 s{sT2}, s{sF}, s{sP}\ns_cbranch_scc0 {Lb}")
        issue_peer(k)
        A(f"{Lb}_OK:")
    A(f"s_mov_b32 s{sN}, 0")
    A("s_waitcnt vmcnt(0)")
    publish(12, 1, "X")
    stamp_at(A, stamp == 10, 2)
    read_mask()
    for k in range(3): try_peer(k)
    set_lb(0); stage(own, True, 1, 2)
    stamp_at(A, stamp == 10, 3)
    for k in range(3):
        block_peer(k)
        if k < 2:
            read_mask()
            for k2 in range(k + 1, 3): try_peer(k2)
        def pre(k=k):
            Lb = newlab("W")
            if k == 2:
                A("s_waitcnt vmcnt(0)"); return
            if k == 0:
                A(f"s_cmp_eq_u32 s{sN}, 3\ns_cbranch_scc0 {Lb}_a\ns_waitcnt vmcnt(16)\ns_branch {Lb}_e\n{Lb}_a:")
            A(f"s_cmp_eq_u32 s{sN}, {k+2}\ns_cbranch_scc0 {Lb}_b\ns_waitcnt vmcnt(8)\ns_branch {Lb}_e\n{Lb}_b:\ns_waitcnt vmcnt(0)\n{Lb}_e:")
        A(f"s_mov_b32 s{sLB}, s{sLBK+k}")
        stage(lambda s_, k=k: f"a[{32*k+4*s_}:{32*k+4*s_+3}]", False, 8, 8, pre=pre)
    A("K1_TZ:")
    stamp_at(A, stamp == 9, 2)
    stamp_at(A, stamp == 10, 4)
    A(f"s_lshl_b32 s{sOB}, s{sB}, 2\ns_add_u32 s{sOB}, s{sOB}, s{sHQ}\ns_mul_i32 s{sOB}, s{sOB}, {8*49152}\ns_add_u32 s{sOB}, s{sOB}, {WS_P}")
    A(f"s_lshl_b32 s{sT1}, s{sWAVE}, 11\ns_add_u32 s{sOB}, s{sOB}, s{sT1}")
    A(f"s_mul_i32 s{sT0}, s{sXC}, 6144\ns_add_u32 s{sT0}, s{sT0}, s{sOB}")
    A("s_nop 7\ns_nop 3")
    for T in range(4):
        for i in range(4):
            A(f"buffer_store_dwordx4 {vr(vO+16*T+4*i,4)}, v{vL16}, s[{sWS}:{sWS+3}], s{sT0} offen offset:{(i%2)*1024} sc1")
            if i % 2 == 1: A(f"s_add_u32 s{sT0}, s{sT0}, 49152")
    A("s_waitcnt vmcnt(0)")
    publish(40, 2, "Z")
    stamp_at(A, stamp == 9, 3)
    A(f"s_mul_i32 s{sT0}, s{sXC}, 49152\ns_add_u32 s{sOB}, s{sOB}, s{sT0}\ns_mov_b32 s{sTO}, 0")
    A("K1_ZP:")
    read_mask()
    A(f"s_and_b32 s{sT2}, s{sF}, 0xff00\ns_cmp_eq_u32 s{sT2}, 0xff00\ns_cbranch_scc0 K1_ZP")
    A("K1_ZG:")
    stamp_at(A, stamp == 9, 4)
    for x in range(8):
        for e in range(2):
            A(f"buffer_load_dwordx4 {vr(160+8*x+4*e,4)}, v{vL16}, s[{sWS}:{sWS+3}], s{sOB} offen offset:{e*1024} sc1")
        A(f"s_add_u32 s{sOB}, s{sOB}, 6144")
    A("v_and_b32 v3, 31, v0\nv_lshlrev_b32 v3, 10, v3\nv_lshrrev_b32 v16, 5, v0\nv_lshl_add_u32 v3, v16, 3, v3")
    A(f"s_lshl_b32 s{sT0}, s{sHQ}, 8\ns_lshl_b32 s{sT1}, s{sXC}, 5\ns_add_u32 s{sT0}, s{sT0}, s{sT1}\ns_add_u32 s{sT0}, s{sT0}, s{sXG}")
    for x in range(1, 8):
        A(f"s_waitcnt vmcnt({14 - 2*x})")
        for r in range(8):
            A(f"v_add_f32 v{160+r}, v{160+r}, v{160+8*x+r}")
    for e in range(2):
        A(f"v_cvt_pk_bf16_f32 v{240+2*e}, v{160+4*e}, v{161+4*e}\nv_cvt_pk_bf16_f32 v{241+2*e}, v{162+4*e}, v{163+4*e}")
        A(f"buffer_store_dwordx2 {vr(240+2*e,2)}, v3, s[{sOUT}:{sOUT+3}], s{sT0} offen offset:{e*16}")
    if stamp: A(f"s_add_u32 s{sWAVE}, s{sWAVE}, 1")
    A("s_branch K1_FIN")
    for tag in range(9):
        par = tag % 2 if tag < 8 else 1
        A(f"K1_RARE{tag}:")
        A(f"s_call_b64 s[{sT0}:{sT1}], K1_RAREP{par}")
        A(f"s_branch K1_CK{tag}")
    for par in range(2): rare(par)

    A("K1_LOADER:")
    vDKc = 4; vDK = 8; vDV, vDW = 16, 17; vDO = 12
    A("v_mov_b32 v20, 0\nv_mov_b32 v21, 0\nv_mov_b32 v22, 0\nv_mov_b32 v23, 0")
    A(f"ds_write_b128 v{vFL}, v[20:23]\nds_write_b128 v{vFL}, v[20:23] offset:16\nds_write_b128 v{vFL}, v[20:23] offset:32")
    A("v_xor_b32 v3, v2, v1")
    for n in range(4):
        A(f"v_xor_b32 v{vDKc+n}, {4*n}, v3\nv_lshlrev_b32 v{vDKc+n}, 4, v{vDKc+n}\nv_lshl_add_u32 v{vDK+n}, v1, 8, v{vDKc+n}")
    A("v_lshlrev_b32 v3, 2, v1\nv_xor_b32 v3, v3, v2\nv_lshlrev_b32 v3, 4, v3")
    A(f"v_lshl_add_u32 v{vDV}, v1, 8, v3\nv_lshl_add_u32 v{vDW}, v1, 13, v3\nv_lshl_add_u32 v{vDO}, v1, 10, v3")
    A(f"s_lshl_b32 s{sKVOFF}, s{sB}, 5\ns_add_u32 s{sKVOFF}, s{sKVOFF}, s{sH}\ns_lshl_b32 s{sKVOFF}, s{sKVOFF}, 18")
    A(f"s_lshl_b32 s{sWQG}, s{sH}, 8\ns_mov_b32 s{sSEEN}, 0")
    A("s_waitcnt lgkmcnt(0)\ns_barrier")
    srd(A, sWQ, 10, 11, 4 << 20)
    srd(A, sK, 6, 7, 64 << 20)
    srd(A, sV, 8, 9, 64 << 20)
    srd(A, sWS, 18, 19, 256 << 20)
    srd(A, sWO, 12, 13, 4 << 20)
    vt = VmTrack(A)
    vLW = 24; vLD = 26; vLF = 28
    A(f"v_lshlrev_b32 v{vLW}, 4, v0\nv_add_u32 v{vLW+1}, {LV}, v{vLW}")
    def pub(off, val):
        A(f"v_mov_b32 v{vLD}, {val}\nds_write_b32 v{vFL}, v{vLD} offset:{off}")
    def wait_prog(val):
        if val <= 0: return
        Lb = newlab("P")
        A(f"s_cmp_ge_u32 s{sSEEN}, {val}\ns_cbranch_scc1 {Lb}_OK")
        A(f"{Lb}:")
        A(f"ds_read_b96 {vr(vLF,3)}, v{vFL} offset:16\ns_waitcnt lgkmcnt(0)")
        A(f"v_min3_u32 v{vLF}, v{vLF}, v{vLF+1}, v{vLF+2}\ns_nop 0\nv_readfirstlane_b32 s{sSEEN}, v{vLF}")
        A(f"s_cmp_ge_u32 s{sSEEN}, {val}\ns_cbranch_scc0 {Lb}")
        A(f"{Lb}_OK:")
    def piece(name):
        j = int(name[1])
        A(f"s_add_u32 s{sT1}, s{sWQG}, {j*64*8192}")
        for n in range(16):
            A(f"s_mov_b32 m0, {WB[j%6][n//8] + (n%8)*1024}")
            A(f"s_add_u32 s{sT1}, s{sT1}, {4*8192}" if n else "s_nop 0")
            A(f"buffer_load_dwordx4 v{vDW}, s[{sWQ}:{sWQ+3}], s{sT1} offen lds")
            vt.issue(name)
    qpub = [0]
    def last_idx(tag): return max(i for i, t in enumerate(vt.ops) if t == tag)
    def pub_q():
        k = qpub[0]
        while k < len(SEQ) and SEQ[k] in vt.ops and last_idx(SEQ[k]) <= vt.done: k += 1
        if k > qpub[0]:
            pub(4, k); qpub[0] = k
    def settle(n):
        if len(vt.ops) - 1 - vt.done > n:
            A(f"s_waitcnt vmcnt({n})"); vt.done = len(vt.ops) - 1 - n
        pub_q()
    def parts(u):
        p = []
        if u <= 31: p.append((sK, LK, True, u))
        if u >= 1: p.append((sV, LV, False, u - 1))
        return p
    def dma_unit(u):
        slot = u % 8
        for (srdb, lbase, isk, tile) in parts(u):
            for g in range(2):
                A(f"s_mov_b32 m0, {lbase + slot*8192 + g*4096}\ns_add_u32 s{sT2}, s{sKVOFF}, {tile*8192 + g*4096}")
                for n in range(4):
                    vo = vDK + n if isk else vDV
                    A(f"buffer_load_dwordx4 v{vo}, s[{srdb}:{srdb+3}], s{sT2} offen offset:{n*1024}{NT} lds")
                    vt.issue(("u", u))
    def rbuf(u, i):
        f = (u - 1) % 7
        if f < 3:
            b = 32 + f * 64 + 4 * i
            return f"v[{b}:{b+3}]"
        b = (f - 3) * 64 + 4 * i
        return f"a[{b}:{b+3}]"
    def reg_unit(u, pace=None):
        for pi, (srdb, lbase, isk, tile) in enumerate(parts(u)):
            for g in range(2):
                if pace is not None: settle(pace)
                A(f"s_add_u32 s{sT2}, s{sKVOFF}, {tile*8192 + g*4096}")
                for n in range(4):
                    vo = vDK + n if isk else vDV
                    A(f"buffer_load_dwordx4 {rbuf(u, pi*8+g*4+n)}, v{vo}, s[{srdb}:{srdb+3}], s{sT2} offen offset:{n*1024}{NT}")
                    vt.issue(("u", u))
    def dump_unit(u):
        slot = u % 8
        for pi in range(2):
            for i in range(8):
                A(f"ds_write_b128 v{vLW+pi}, {rbuf(u, pi*8+i)} offset:{slot*8192 + i*1024}")
        A("s_waitcnt lgkmcnt(0)")
    QN = opt.get("qn", 40)
    def qblock():
        for i, p in enumerate(SEQ):
            if p in PCOND:
                vt.wait(SEQ[need(PCOND[p]) - 1]); pub_q()
                wait_prog(PCOND[p])
            piece(p)
            if i >= 2: settle(QN)
    PB = opt.get("paceb", 44)
    W = opt.get("win", 3)
    JOIN = 15
    A(f"s_cmp_eq_u32 s{sGRP}, 1\ns_cbranch_scc1 K1_LB")
    qblock()
    upub = [0]
    def pub_u(upto):
        if upto > upub[0]:
            vt.wait(("u", upto - 1)); pub_q(); pub(0, upto); upub[0] = upto
    for u in range(JOIN + W):
        if u < 8:
            c = UCOND[u]
            if c > 0:
                vt.wait(SEQ[need(min(c, 7)) - 1]); pub_q()
        else:
            c = QD + u - 7
        wait_prog(c)
        dma_unit(u)
        if u <= 2:
            vt.wait(SEQ[{0: 6, 1: 7, 2: 8}[u] - 1]); pub_q()
        if u >= W: pub_u(u - W + 1)
    assert upub[0] == JOIN
    A("s_branch K1_LJ")
    A("K1_LB:")
    vt.ops = []; vt.done = -1; qpub[0] = 0
    dma_unit(0)
    for u in range(1, 8): reg_unit(u, PB)
    pub(8, 1)
    qblock()
    pub(0, 1)
    for k in range(qpub[0] + 1, len(SEQ) + 1):
        vt.wait(SEQ[k - 1]); pub_q()
    for u in range(1, JOIN):
        wait_prog(UCOND[u] if u < 8 else QD + u - 7)
        vt.wait(("u", u))
        dump_unit(u)
        pub(0, u + 1)
        if u <= 7: reg_unit(u + 7)
        nu = u + W
        if nu >= JOIN:
            wait_prog(QD + nu - 7)
            dma_unit(nu)
    A("K1_LJ:")
    vt.ops = [("u", u) for u in range(JOIN, JOIN + W) for _ in range(16)]; vt.done = -1; qpub[0] = len(SEQ)
    for u in range(JOIN, 33):
        vt.wait(("u", u))
        pub(0, u + 1)
        nu = u + W
        if nu <= 32:
            wait_prog(QD + nu - 7)
            dma_unit(nu)
    stamp_at(A, stamp == 1, 5)
    srd(A, sDBG, 16, 17, 256)
    A(f"v_lshlrev_b32 v21, 2, v0\ns_mov_b32 s{sTO}, 0\ns_mov_b32 s{sT0}, 0x01010101")
    A("K1_ALLW:")
    A(f"buffer_load_dword v22, v21, s[{sDBG}:{sDBG+3}], 0 offen sc1\ns_waitcnt vmcnt(0)")
    A(f"v_cmp_ne_u32 vcc, s{sT0}, v22\ns_cbranch_vccz K1_ALLOK")
    A(f"s_sleep 8\ns_add_u32 s{sTO}, s{sTO}, 1\ns_cmp_lt_u32 s{sTO}, {TMO}\ns_cbranch_scc1 K1_ALLW")
    A("K1_ALLOK:")
    A("v_and_b32 v21, 15, v0\nv_lshlrev_b32 v21, 2, v21")
    A("K1_PM:")
    A(f"buffer_load_dword v22, v21, s[{sWS}:{sWS+3}], s{sMB} offen sc1")
    A(f"ds_read_b96 {vr(vLF,3)}, v{vFL} offset:16\ns_waitcnt vmcnt(0) lgkmcnt(0)")
    A(f"v_cmp_ne_u32 vcc, 0, v22\nv_min3_u32 v{vLF}, v{vLF}, v{vLF+1}, v{vLF+2}\ns_nop 0\nv_mov_b32 v23, vcc_lo\nv_readfirstlane_b32 s{sT0}, v{vLF}")
    A(f"ds_write_b32 v{vFL}, v23 offset:32")
    A(f"s_cmp_ge_u32 s{sT0}, {QD + 32}\ns_cbranch_scc0 K1_PM")
    A("s_waitcnt lgkmcnt(0)\ns_barrier")
    vt.ops = []; vt.done = -1
    wpub = 0
    for c in range(8):
        hs = c // 2
        if c % 2 == 0:
            A(f"s_add_u32 s{sT1}, s{sHQ}, {hs}\ns_and_b32 s{sT1}, s{sT1}, 3\ns_lshl_b32 s{sT0}, s{sXC}, 2\ns_add_u32 s{sT1}, s{sT1}, s{sT0}")
            A(f"s_lshl_b32 s{sT1}, s{sT1}, 17\ns_lshl_b32 s{sT0}, s{sHQ}, 8\ns_add_u32 s{sT1}, s{sT1}, s{sT0}")
        for n in range(16):
            A(f"s_mov_b32 m0, {c*16*KB + n*1024}\ns_nop 0")
            A(f"buffer_load_dwordx4 v{vDO}, s[{sWO}:{sWO+3}], s{sT1} offen lds")
            A(f"s_add_u32 s{sT1}, s{sT1}, 4096")
            vt.issue(("c", c))
        if c >= 2:
            vt.wait(("c", c - 2)); pub(36, c - 1); wpub = c - 1
            if c == 2: stamp_at(A, stamp == 10, 6)
    def poll_once():
        A(f"buffer_load_dword v22, v21, s[{sWS}:{sWS+3}], s{sMB} offen sc1")
        vt.issue("poll")
    def poll_take():
        vt.wait("poll")
        A(f"v_cmp_ne_u32 vcc, 0, v22\ns_nop 1\nv_mov_b32 v23, vcc_lo\nds_write_b32 v{vFL}, v23 offset:32")
    poll_once()
    for c in range(wpub, 8):
        vt.wait(("c", c)); pub(36, c + 1)
    poll_take()
    A(f"s_mov_b32 s{sTO}, 0")
    A("K1_PZ:")
    A(f"buffer_load_dword v22, v21, s[{sWS}:{sWS+3}], s{sMB} offen sc1\ns_waitcnt vmcnt(0)")
    A(f"v_cmp_ne_u32 vcc, 0, v22\ns_nop 1\nv_mov_b32 v23, vcc_lo\ns_and_b32 s{sT0}, vcc_lo, 0xff0f\nds_write_b32 v{vFL}, v23 offset:32")
    A(f"s_cmp_eq_u32 s{sT0}, 0xff0f\ns_cbranch_scc1 K1_FIN")
    A(f"s_sleep 1\ns_add_u32 s{sTO}, s{sTO}, 1\ns_cmp_lt_u32 s{sTO}, {TMO}\ns_cbranch_scc1 K1_PZ")
    A(f"v_mov_b32 v23, -1\nds_write_b32 v{vFL}, v23 offset:32")
    A("K1_FIN:")
    if stamp:
        stamp_store(A, sWS, sT0, f"s_lshl_b32 s{sT0}, s2, 2\ns_add_u32 s{sT0}, s{sT0}, s{sWAVE}", WS_STAMP)
    A("K1_END:\ns_endpgm")

def main(stamp=0, opt=None):
    A = Asm()
    A.raw(f"; @launch grid=(256,1,1) block=(256,1,1) lds={LDS_BYTES}")
    A.raw('.amdgcn_target "amdgcn-amd-amdhsa--gfx950"\n.text')
    A.raw(f".globl {KN}\n.type {KN},@function")
    gen(A, stamp, opt)
    A.raw('.section .rodata,"a"')
    A.raw(kd(KN, 512, 256))
    return A.text()

if __name__ == "__main__":
    stamp = 0
    opt = {}
    for a in sys.argv[1:]:
        if a.startswith("--stamp"): stamp = int(a[7:] or 1)
        elif a.startswith("--") and "=" in a:
            k, v = a[2:].split("="); opt[k] = int(v)
    out = [a for a in sys.argv[1:] if not a.startswith("--")][0]
    open(out, "w").write(main(stamp, opt))
```

```python
import sys, struct
from gen1 import Asm, vr, f32bits, srd, VmTrack, stamp_at, stamp_store, kd, WS_STAMP, SCALE_LOG2E, THRESH

KN = "standalone__gqa_block_cached__near_ridge_kernel"
KB = 1024
LK = 0
LV = 64 * KB
WB = [(128*KB, 136*KB), (144*KB, 64*KB), (8*KB, 16*KB), (72*KB, 80*KB), (24*KB, 32*KB), (88*KB, 96*KB)]
XB = [40 * KB, 104 * KB]
FL = 152 * KB
LDS_BYTES = 160 * KB
WS_O = 0
WS_MB = 7 << 20
WS_P = 32 << 20
QD = 8
NT = " nt"
SEQ = [f"w{i}" for i in range(8)]
PCOND = {"w6": 1, "w7": 2}
def need(hc): return hc + 1
UCOND = {0: 0, 1: 4, 2: 4, 3: 6, 4: 6, 5: 6, 6: 6, 7: 6}
TMO = 0x40000

def gen(A, stamp=0, opt=None):
    opt = opt or {}
    sX, sK, sV, sWQ, sWO, sWS = 20, 24, 28, 32, 36, 40
    sDBG, sOUT = 24, 28
    sWAVE, sB, sH = 44, 45, 46
    sKVOFF = 47
    sT0, sT1, sT2, sT3 = 48, 49, 50, 51
    sC, sTHR = 52, 53
    sXG = 54; sWQG = 55
    sTILE = 58; sSEEN = 59
    sGRP = 62
    sXC, sHQ = 80, 81
    sF, sP, sI, sMB, sTO, sLB, sOB = 82, 83, 84, 85, 86, 87, 88
    lab = [0]
    def newlab(p):
        lab[0] += 1
        return f"K1_{p}{lab[0]}"
    A.raw(f".p2align 8\n{KN}:")
    A("s_cmp_ge_u32 s2, 256\ns_cbranch_scc1 K1_END")
    if stamp:
        for i in range(8): A(f"s_mov_b64 s[{64+2*i}:{65+2*i}], 0")
    stamp_at(A, stamp, 0)
    A("s_load_dwordx16 s[4:19], s[0:1], 0")
    A("v_lshrrev_b32 v1, 6, v0\nv_and_b32 v0, 63, v0\ns_nop 0")
    A(f"v_readfirstlane_b32 s{sWAVE}, v1")
    A(f"s_and_b32 s{sXC}, s2, 7\ns_lshr_b32 s{sT1}, s2, 3\ns_and_b32 s{sHQ}, s{sT1}, 3")
    A(f"s_lshl_b32 s{sH}, s{sXC}, 2\ns_add_u32 s{sH}, s{sH}, s{sHQ}\ns_lshr_b32 s{sB}, s{sT1}, 2")
    if opt.get("gtype", 0) == 0: A(f"s_add_u32 s{sGRP}, s{sB}, s{sH}\ns_and_b32 s{sGRP}, s{sGRP}, 1")
    else: A(f"s_and_b32 s{sGRP}, s{sB}, 1")
    A(f"s_lshl_b32 s{sMB}, s2, 7\ns_add_u32 s{sMB}, s{sMB}, {WS_MB}")
    A("v_lshrrev_b32 v1, 4, v0\nv_and_b32 v2, 15, v0")
    vFL = 18
    A(f"v_mov_b32 v{vFL}, {FL}")
    A(f"s_cmp_eq_u32 s{sWAVE}, 0\ns_cbranch_scc1 K1_LOADER")

    A(f"s_sub_u32 s{sWAVE}, s{sWAVE}, 1")
    vDX = 64
    A("v_xor_b32 v3, v2, v1")
    for n in range(4):
        A(f"v_xor_b32 v{vDX+n}, {4*n}, v3\nv_lshlrev_b32 v{vDX+n}, 4, v{vDX+n}\nv_lshl_add_u32 v{vDX+n}, v1, 10, v{vDX+n}")
    A(f"s_mul_i32 s{sXG}, s{sB}, 96\ns_lshl_b32 s{sT0}, s{sWAVE}, 5\ns_add_u32 s{sXG}, s{sXG}, s{sT0}\ns_lshl_b32 s{sXG}, s{sXG}, 10")
    A(f"s_lshl_b32 s56, s{sWAVE}, 13")
    A("s_waitcnt lgkmcnt(0)\ns_barrier")
    srd(A, sX, 4, 5, 8*96*512*2)
    srd(A, sWS, 18, 19, 256 << 20)
    srd(A, sDBG, 16, 17, 256)
    srd(A, sOUT, 14, 15, 8*96*512*2)
    A("v_and_b32 v70, 31, v0\nv_lshlrev_b32 v70, 2, v70\nv_mov_b32 v71, 0")
    A(f"s_cmp_eq_u32 s{sWAVE}, 0\ns_cbranch_scc0 K1_NOCLR")
    A(f"buffer_store_dword v71, v70, s[{sWS}:{sWS+3}], s{sMB} offen sc1")
    A("K1_NOCLR:")
    A(f"s_cmp_eq_u32 s{sGRP}, 0\ns_cbranch_scc1 K1_QGO")
    A("K1_QW:")
    A(f"s_sleep 2\nds_read_b32 v58, v{vFL} offset:8\ns_waitcnt lgkmcnt(0)\nv_readfirstlane_b32 s{sT3}, v58")
    A(f"s_cmp_eq_u32 s{sT3}, 0\ns_cbranch_scc1 K1_QW")
    A("K1_QGO:")
    vtc = VmTrack(A)
    def xops(j):
        ops = []
        for n in range(8):
            pre = f"s_add_u32 s57, s{sXG}, {j*256 + n*4096}\ns_add_u32 s60, s56, {XB[j%2] + n*1024}\ns_mov_b32 m0, s60\ns_nop 0\n"
            ops.append(pre + f"buffer_load_dwordx4 v{vDX+n%4}, s[{sX}:{sX+3}], s57 offen{' nt' if opt.get('xnt', 0) else ''} lds")
        return ops
    for j in range(2):
        for op in xops(j):
            A(op); vtc.issue(j)
    vKA = 20; vVA = 28
    vNMC, vL, vTS, vTMP, vTMP2, vAL = 48, 49, 50, 51, 52, 53
    vL16 = 54; vPG = 55; vPA = 56
    vF0 = 58
    vQ = 64; vO = 96
    vXA = [32, 40]
    vWA = [4, 8, 12]
    vS = [160, 176]
    vP = 192; vPK = 208; vKF = 216
    aVF = 0
    A(f"s_mov_b32 s{sC}, {hex(f32bits(SCALE_LOG2E))}\ns_mov_b32 s{sTHR}, {hex(f32bits(THRESH))}")
    A("v_and_b32 v3, 31, v0\nv_lshrrev_b32 v19, 5, v0")
    A("v_and_b32 v60, 15, v3\nv_xor_b32 v60, v60, v19\nv_lshlrev_b32 v60, 4, v60")
    A(f"v_lshl_add_u32 v{vKA}, v3, 8, v60")
    for s in range(1, 8):
        A(f"v_xor_b32 v{vKA+s}, {32*s}, v{vKA}")
    A(f"s_add_u32 s{sT1}, s56, {XB[1]}\ns_add_u32 s{sT0}, s56, {XB[0]}")
    for s in range(8):
        A(f"v_add_u32 v{vXA[0]+s}, s{sT0}, v{vKA+s}\nv_add_u32 v{vXA[1]+s}, s{sT1}, v{vKA+s}")
    A("v_lshrrev_b32 v60, 2, v2")
    A("v_and_b32 v61, 1, v1\nv_lshlrev_b32 v61, 5, v61")
    A("v_and_b32 v62, 3, v2\nv_lshlrev_b32 v62, 3, v62")
    A("v_add_u32 v61, v61, v62")
    for T in range(4):
        A(f"v_xor_b32 v62, {T}, v60\nv_lshl_add_u32 v62, v62, 6, v61")
        A(f"v_lshl_add_u32 v63, v19, 2, v60\nv_lshl_add_u32 v{vVA+T}, v63, 8, v62")
        A(f"v_add_u32 v{vVA+T}, {LV}, v{vVA+T}")
        A(f"v_lshl_add_u32 v63, v19, 3, v60\nv_lshl_add_u32 v{vWA[0]+T}, v63, 8, v62")
        A(f"v_add_u32 v{vWA[1]+T}, {64*KB}, v{vWA[0]+T}\nv_add_u32 v{vWA[2]+T}, {128*KB}, v{vWA[0]+T}")
    A(f"v_lshlrev_b32 v{vL16}, 4, v0")
    A(f"s_lshl_b32 s{sT0}, s{sWAVE}, 2\ns_add_u32 s{sT0}, s{sT0}, {FL+16}\nv_mov_b32 v{vPA}, s{sT0}")
    A(f"s_mov_b32 s{sSEEN}, 0")

    def wait_flag_ops(off, val):
        L = newlab("L")
        return "\n".join([
            f"s_cmp_ge_u32 s{sSEEN}, {val}\ns_cbranch_scc1 {L}_OK",
            f"{L}:",
            f"ds_read_b32 v{vF0}, v{vFL} offset:{off}\ns_waitcnt lgkmcnt(0)\nv_readfirstlane_b32 s{sSEEN}, v{vF0}",
            f"s_cmp_ge_u32 s{sSEEN}, {val}\ns_cbranch_scc0 {L}",
            f"{L}_OK:"])

    AB = [vS[0], vS[1], vP]
    lops = []
    def L(op, tag):
        A(op); lops.append(tag)
    def lwait(tag):
        idx = max(i for i, t in enumerate(lops) if t == tag)
        A(f"s_waitcnt lgkmcnt({min(15, len(lops) - 1 - idx)})")
    def rd(g):
        hc, s4 = g // 4, g % 4
        base = AB[g % 3]
        wb = WB[hc % 6][s4 // 2] + (s4 % 2) * 16 * 256
        reg = vWA[wb // (64*KB)]; off = wb % (64*KB)
        return [f"ds_read_b64_tr_b16 {vr(base+4*T+2*t,2)}, v{reg+T} offset:{off + 4*t*256}" for T in range(4) for t in range(2)]
    aX = 32
    def xrd(j): return [f"ds_read_b128 a[{aX+32*j+4*s}:{aX+32*j+4*s+3}], v{vXA[j%2]+s}" for s in range(8)]
    vtc.wait(0)
    for op in xrd(0): A(op)
    vtc.wait(1)
    for op in xrd(1): A(op)
    A("s_waitcnt lgkmcnt(0)")
    for j in (2, 3):
        for op in xops(j):
            A(op); vtc.issue(j)
    A(wait_flag_ops(4, need(0)))
    xq = []
    for op in rd(0): L(op, 0)
    for op in rd(1): L(op, 1)
    for g in range(32):
        lwait(g)
        if g % 4 == 3:
            A(f"v_mov_b32 v{vPG}, {g//4+1}")
            L(f"ds_write_b32 v{vPA}, v{vPG}", "p")
        if g == 9:
            vtc.wait(3); xq += xrd(2) + xrd(3)
            A(f"s_cmp_eq_u32 s{sWAVE}, 0\ns_cbranch_scc0 K1_NORDY")
            A(f"v_mov_b32 v70, 0\nv_mov_b32 v71, 1\ns_mov_b64 exec, 1\nbuffer_store_byte v71, v70, s[{sDBG}:{sDBG+3}], s2 offen sc1\ns_mov_b64 exec, -1")
            A("K1_NORDY:")
        base = AB[g % 3]
        nx = rd(g + 2) if g + 2 < 32 else []
        for T in range(4):
            c = "0" if g == 0 else vr(vO+16*T,16)
            A(f"v_mfma_f32_32x32x16_bf16 {vr(vO+16*T,16)}, {vr(base+4*T,4)}, a[{aX+4*g}:{aX+4*g+3}], {c}")
            if T == 0 and nx and (g + 2) % 4 == 0:
                A(wait_flag_ops(4, need((g + 2) // 4)))
            for op in nx[2*T:2*T+2]: L(op, g + 2)
            if xq: L(xq.pop(0), "x")
    stamp_at(A, stamp == 1, 1)
    A(f"s_mov_b32 s{sSEEN}, 0\ns_mov_b32 s{sTILE}, 1")
    def wait_landed_ops():
        return wait_flag_ops(0, f"s{sTILE}") + f"\ns_add_u32 s{sTILE}, s{sTILE}, 1"
    def kreads(slot):
        return [f"ds_read_b128 {vr(vKF+4*s,4)}, v{vKA+s} offset:{LK+slot*8192}" for s in range(8)]
    A(wait_landed_ops())
    for op in kreads(0): A(op)
    A("s_nop 7")
    for s in range(8):
        T, hh = s // 2, s % 2
        src = vO + 16 * T + 8 * hh
        d = vQ + 4 * s
        for j in range(4):
            A(f"v_cvt_pk_bf16_f32 v{d+j}, v{src+2*j}, v{src+2*j+1}")
        A("s_nop 1")
        A(f"v_permlane32_swap_b32 v{d}, v{d+2}")
        A(f"v_permlane32_swap_b32 v{d+1}, v{d+3}")

    def consumed():
        A(f"v_add_u32 v{vPG}, 1, v{vPG}\nds_write_b32 v{vPA}, v{vPG}")
    NE1 = 10
    def fma_ops(Sc): return [f"v_fma_f32 v{vP+r}, v{Sc+r}, s{sC}, v{vNMC}" for r in range(16)]
    def exp_ops(): return [f"v_exp_f32 v{vP+r}, v{vP+r}" for r in range(16)]
    def sum_ops():
        ops = [f"v_add_f32 v{vTS}, v{vP}, v{vP+1}", f"v_add_f32 v{vTMP}, v{vP+2}, v{vP+3}"]
        for r in range(4, 16, 2):
            ops += [f"v_add_f32 v{vTS}, v{vTS}, v{vP+r}", f"v_add_f32 v{vTMP}, v{vTMP}, v{vP+r+1}"]
        ops.append(f"v_add_f32 v{vTS}, v{vTS}, v{vTMP}")
        return ops
    def part1(Sc):
        fm, ex = fma_ops(Sc), exp_ops()[:NE1]
        seq = fm[:4]; rest = fm[4:]
        for i in range(max(len(rest), len(ex))):
            if i < len(ex): seq.append(ex[i])
            if i < len(rest): seq.append(rest[i])
        return seq
    def cost(op):
        if op.startswith("v_exp"): return 8
        if op.startswith("ds_"): return 8
        return 4 * (op.count("\n") + 1) if not op.startswith("s_cmp") else 12
    def interleave(mfmas, fillers):
        tot = sum(cost(o) for o in fillers)
        n = len(mfmas)
        if n == 0:
            for op in fillers: A(op)
            return
        acc = 0; k = 0
        for i, m in enumerate(mfmas):
            A(m)
            tgt = tot * (i + 1) / n
            while k < len(fillers) and (acc + cost(fillers[k]) / 2 <= tgt or i == n - 1):
                A(fillers[k]); acc += cost(fillers[k]); k += 1
    def qk(Sn):
        return [f"v_mfma_f32_32x32x16_bf16 {vr(Sn,16)}, {vr(vKF+4*s,4)}, {vr(vQ+4*s,4)}, {'0' if s == 0 else vr(Sn,16)}" for s in range(8)]

    A("s_waitcnt lgkmcnt(0)")
    z = [f"v_mov_b32 v{vO+r}, 0" for r in range(64)] + [f"v_mov_b32 v{vNMC}, 0x7f800000", f"v_mov_b32 v{vL}, 0"]
    interleave(qk(vS[0]), z)
    consumed()
    A(wait_landed_ops())
    for op in kreads(1): A(op)
    A("s_nop 7")
    for op in part1(vS[0]): A(op)

    def iteration(tag, k, last):
        par = k % 2
        Sc, Sn = vS[par], vS[par ^ 1]
        vslot = (k + 1) % 8
        A("s_waitcnt lgkmcnt(0)")
        vrd = [f"ds_read_b64_tr_b16 a[{aVF+16*u+4*T+2*t}:{aVF+16*u+4*T+2*t+1}], v{vVA+T} offset:{vslot*8192+(16*u+8*t)*256}"
               for u in range(2) for T in range(4) for t in range(2)]
        ex = exp_ops()[NE1:]
        f = []
        rest = ex + ["s_nop 0"] + sum_ops()
        ri = 0
        for i in range(16):
            f.append(vrd[i])
            if i % 2 == 1:
                take = 1 if ri < len(ex) else 3
                f += rest[ri:ri+take]; ri += take
        f += rest[ri:]
        f.append(f"v_cmp_nge_f32 vcc, s{sTHR}, v{vTS}\ns_cbranch_vccnz K1_RARE{tag}\nK1_CK{tag}:")
        f.append(f"v_add_f32 v{vL}, v{vL}, v{vTS}")
        f += [f"v_cvt_pk_bf16_f32 v{vPK+j}, v{vP+2*j}, v{vP+2*j+1}" for j in range(8)]
        interleave([] if last else qk(Sn), f)
        A("s_waitcnt lgkmcnt(0)")
        if not last: consumed()
        else: A("s_nop 0")
        pv = [f"v_mfma_f32_32x32x16_bf16 {vr(vO+16*T,16)}, a[{aVF+16*u+4*T}:{aVF+16*u+4*T+3}], {vr(vPK+4*u,4)}, {vr(vO+16*T,16)}"
              for u in range(2) for T in range(4)]
        if last:
            A("s_nop 0")
            for m in pv: A(m)
            return
        p1 = part1(Sn)
        h = 10
        kr = kreads((k + 2) % 8)
        tail = []
        r2 = p1[h:]
        for i in range(8):
            tail.append(kr[i])
            if i % 2 == 1: tail += r2[:2]; r2 = r2[2:]
        tail += r2
        f = ["s_nop 3"] + p1[:h] + [wait_landed_ops()] + tail
        interleave(pv, f)

    def rare(par):
        Sc = vS[par]
        A(f"K1_RAREP{par}:")
        A(f"v_max3_f32 v{vTMP}, v{Sc}, v{Sc+1}, v{Sc+2}")
        for r in range(3, 15, 2):
            A(f"v_max3_f32 v{vTMP}, v{vTMP}, v{Sc+r}, v{Sc+r+1}")
        A(f"v_max_f32 v{vTMP}, v{vTMP}, v{Sc+15}")
        A(f"v_mov_b32 v{vTMP2}, v{vTMP}\ns_nop 1\nv_permlane32_swap_b32 v{vTMP}, v{vTMP2}\nv_max_f32 v{vTMP}, v{vTMP}, v{vTMP2}")
        A(f"v_mul_f32 v{vTMP}, s{sC}, v{vTMP}")
        A(f"v_sub_f32 v{vTMP}, 0, v{vTMP}\nv_min_f32 v{vTMP}, v{vNMC}, v{vTMP}")
        A(f"v_sub_f32 v{vAL}, v{vTMP}, v{vNMC}\nv_exp_f32 v{vAL}, v{vAL}\nv_mov_b32 v{vNMC}, v{vTMP}")
        A(f"v_mul_f32 v{vL}, v{vL}, v{vAL}")
        for r in range(64):
            A(f"v_mul_f32 v{vO+r}, v{vO+r}, v{vAL}")
        for op in fma_ops(Sc) + exp_ops(): A(op)
        A("s_nop 0")
        for op in sum_ops(): A(op)
        A(f"s_setpc_b64 s[{sT0}:{sT1}]")

    A("K1_LOOP:")
    for k in range(8):
        if k == 7:
            A(f"s_cmp_eq_u32 s{sTILE}, 34\ns_cbranch_scc1 K1_LAST")
        iteration(k, k, False)
    if stamp == 1:
        for idx, val in ((2, 11), (3, 19), (4, 27)):
            A(f"s_cmp_eq_u32 s{sTILE}, {val}\ns_cbranch_scc0 K1_NS{idx}")
            stamp_at(A, 1, idx)
            A(f"K1_NS{idx}:")
    A("s_branch K1_LOOP")
    A("K1_LAST:")
    iteration(8, 7, True)
    A(f"v_mov_b32 v{vTMP}, v{vL}\ns_nop 1\nv_permlane32_swap_b32 v{vL}, v{vTMP}\nv_add_f32 v{vL}, v{vL}, v{vTMP}")
    A(f"v_rcp_f32 v{vAL}, v{vL}")
    A(f"s_lshl_b32 s{sOB}, s{sB}, 5\ns_lshl_b32 s{sT0}, s{sXC}, 2\ns_add_u32 s{sOB}, s{sOB}, s{sT0}\ns_mul_i32 s{sOB}, s{sOB}, 24576\ns_add_u32 s{sOB}, s{sOB}, s56")
    A(f"s_mul_i32 s{sT0}, s{sHQ}, 24576\ns_add_u32 s{sT0}, s{sT0}, s{sOB}\ns_add_u32 s{sT1}, s{sT0}, 4096")
    A("s_nop 3")
    A(f"s_lshl_b32 s{sT2}, s{sHQ}, 2\ns_lshl_b32 s{sP}, 1, s{sT2}\ns_xor_b32 s{sP}, s{sP}, 0x1111")
    stamp_at(A, stamp in (1,), 6)
    stamp_at(A, stamp in (9, 10), 1)
    tt = VmTrack(A)
    for T in range(4):
        for ip in range(2):
            src = vO + 16 * T + 8 * ip
            blk = 2 * T + ip
            d = vKF + 4 * blk
            for j in range(8):
                A(f"v_mul_f32 v{src+j}, v{src+j}, v{vAL}")
            for j in range(4):
                A(f"v_cvt_pk_bf16_f32 v{d+j}, v{src+2*j}, v{src+2*j+1}")
            A(f"buffer_store_dwordx4 {vr(d,4)}, v{vL16}, s[{sWS}:{sWS+3}], s{sT0 if blk < 4 else sT1} offen offset:{(blk%4)*1024} sc1")
            tt.issue("ost")
    consumed()
    A(f"s_mov_b32 s{sSEEN}, 0")
    A(wait_flag_ops(44, 1))
    A(f"s_mov_b32 s{sSEEN}, 0")
    vTA = 4
    vZ = 8; vFT = 9; vM1 = 10; vM2 = 11; vONE = 12
    A(f"v_and_b32 v{vM1}, 3, v0\nv_lshlrev_b32 v{vM1}, 2, v{vM1}\nv_and_b32 v{vM2}, 7, v0\nv_lshlrev_b32 v{vM2}, 2, v{vM2}\nv_add_u32 v{vM2}, 32, v{vM2}\nv_mov_b32 v{vONE}, 1")

    def publish(which):
        if which == 1:
            A(f"v_and_b32 v16, 3, v0\nv_lshlrev_b32 v16, 10, v16")
            A(f"s_lshl_b32 s{sT0}, s{sB}, 5\ns_add_u32 s{sT0}, s{sT0}, s{sXC}\ns_lshl_b32 s{sT0}, s{sT0}, 7\ns_lshl_b32 s{sT1}, s{sHQ}, 2\ns_add_u32 s{sT0}, s{sT0}, s{sT1}\ns_add_u32 s{sT0}, s{sT0}, {WS_MB}")
            msk = 15
        else:
            A(f"v_and_b32 v16, 7, v0\nv_lshlrev_b32 v16, 7, v16")
            A(f"s_andn2_b32 s{sT0}, s2, 7\ns_lshl_b32 s{sT0}, s{sT0}, 7\ns_lshl_b32 s{sT1}, s{sXC}, 2\ns_add_u32 s{sT0}, s{sT0}, s{sT1}\ns_add_u32 s{sT0}, s{sT0}, {WS_MB + 16}")
            msk = 255
        A(f"s_add_u32 s{sT0}, s{sT0}, s{sWAVE}")
        A("s_waitcnt vmcnt(0)")
        A(f"s_mov_b64 exec, {msk}\nbuffer_store_byte v{vONE}, v16, s[{sWS}:{sWS+3}], s{sT0} offen sc1\ns_mov_b64 exec, -1")

    def peer_load(areg, tag):
        A(f"s_mul_i32 s{sT0}, s{sI}, 24576\ns_add_u32 s{sT0}, s{sT0}, s{sOB}\ns_add_u32 s{sT1}, s{sT0}, 4096")
        for blk in range(8):
            A(f"buffer_load_dwordx4 a[{areg+4*blk}:{areg+4*blk+3}], v{vL16}, s[{sWS}:{sWS+3}], s{sT0 if blk < 4 else sT1} offen offset:{(blk%4)*1024} sc1")
            tt.issue(tag)

    vTB = 20
    def stage(bfrag, first, w0, w4, pre=None):
        A(f"s_sub_u32 s{sT0}, s{sLB}, {16*KB + LV}\ns_add_u32 s{sT1}, s{sLB}, {(128*KB if first else 56*KB) - LV}")
        for T in range(4):
            A(f"v_add_u32 v{vTA+T}, s{sT0}, v{vVA+T}\nv_add_u32 v{vTB+T}, s{sT1}, v{vVA+T}")
        lo = []
        def LL(op, tag): A(op); lo.append(tag)
        def lw(tag):
            idx = max(i for i, t in enumerate(lo) if t == tag)
            A(f"s_waitcnt lgkmcnt({min(15, len(lo) - 1 - idx)})")
        def r2(s):
            ra = vTB if s < 4 else vTA
            return [f"ds_read_b64_tr_b16 {vr(AB[s%3]+4*T+2*t,2)}, v{ra+T} offset:{(16*s+8*t)*256}" for T in range(4) for t in range(2)]
        A(wait_flag_ops(36, w0))
        for op in r2(0): LL(op, 0)
        for op in r2(1): LL(op, 1)
        if pre: pre()
        for s in range(8):
            lw(s)
            nx = r2(s + 2) if s + 2 < 8 else []
            for T in range(4):
                c = "0" if (first and s == 0) else vr(vO+16*T,16)
                A(f"v_mfma_f32_32x32x16_bf16 {vr(vO+16*T,16)}, {vr(AB[s%3]+4*T,4)}, {bfrag(s)}, {c}")
                if T == 0 and s == 2 and w4 is not None: A(wait_flag_ops(36, w4))
                for op in nx[2*T:2*T+2]: LL(op, s + 2)

    own = lambda s: vr(vKF + 4 * s, 4)
    def set_lb(slot): A(f"s_mov_b32 s{sLB}, {slot*16*KB}")
    sN = 89; sLBK = 90
    def read_mask():
        A(f"ds_read_b32 v{vF0}, v{vFL} offset:48\ns_waitcnt lgkmcnt(0)\nv_readfirstlane_b32 s{sF}, v{vF0}\ns_nop 0\ns_lshr_b32 s{sF}, s{sF}, s{sWAVE}")
    def issue_peer(k):
        A(f"s_ff1_i32_b32 s{sI}, s{sT2}\ns_bitset0_b32 s{sP}, s{sI}\ns_lshr_b32 s{sI}, s{sI}, 2")
        peer_load(32 * k, "p")
        A(f"s_sub_u32 s{sLBK+k}, s{sI}, s{sHQ}\ns_and_b32 s{sLBK+k}, s{sLBK+k}, 3\ns_lshl_b32 s{sLBK+k}, s{sLBK+k}, 14")
        A(f"s_mov_b32 s{sN}, {k+1}")
    def try_peer(k):
        Lb = newlab("T")
        A(f"s_cmp_eq_u32 s{sN}, {k}\ns_cbranch_scc0 {Lb}")
        A(f"s_and_b32 s{sT2}, s{sF}, s{sP}\ns_cbranch_scc0 {Lb}")
        issue_peer(k)
        A(f"{Lb}:")
    def block_peer(k):
        Lb = newlab("B")
        A(f"s_cmp_gt_u32 s{sN}, {k}\ns_cbranch_scc1 {Lb}_OK")
        A(f"{Lb}:")
        read_mask()
        A(f"s_and_b32 s{sT2}, s{sF}, s{sP}\ns_cbranch_scc0 {Lb}")
        issue_peer(k)
        A(f"{Lb}_OK:")
    A(f"s_mov_b32 s{sN}, 0")
    publish(1)
    stamp_at(A, stamp == 10, 2)
    read_mask()
    for k in range(3): try_peer(k)
    set_lb(0); stage(own, True, 1, 2)
    stamp_at(A, stamp == 10, 3)
    for k in range(3):
        block_peer(k)
        if k < 2:
            read_mask()
            for k2 in range(k + 1, 3): try_peer(k2)
        def pre(k=k):
            Lb = newlab("W")
            if k == 2:
                A("s_waitcnt vmcnt(0)"); return
            if k == 0:
                A(f"s_cmp_eq_u32 s{sN}, 3\ns_cbranch_scc0 {Lb}_a\ns_waitcnt vmcnt(16)\ns_branch {Lb}_e\n{Lb}_a:")
            A(f"s_cmp_eq_u32 s{sN}, {k+2}\ns_cbranch_scc0 {Lb}_b\ns_waitcnt vmcnt(8)\ns_branch {Lb}_e\n{Lb}_b:\ns_waitcnt vmcnt(0)\n{Lb}_e:")
        A(f"s_mov_b32 s{sLB}, s{sLBK+k}")
        A(f"s_lshr_b32 s{sT3}, s{sLB}, 13\ns_add_u32 s{sT3}, s{sT3}, 2")
        stage(lambda s_, k=k: f"a[{32*k+4*s_}:{32*k+4*s_+3}]", False, f"s{sT3}", None, pre=pre)
        if k < 2: stamp_at(A, stamp == 10, 5 + k)
    A("K1_TZ:")
    stamp_at(A, stamp == 9, 2)
    stamp_at(A, stamp == 10, 4)
    BF = opt.get("bfp", 1)
    RS = 8 * 3072 if BF else 49152
    SS = 3072 if BF else 6144
    A(f"s_lshl_b32 s{sOB}, s{sB}, 2\ns_add_u32 s{sOB}, s{sOB}, s{sHQ}\ns_mul_i32 s{sOB}, s{sOB}, {8*RS}\ns_add_u32 s{sOB}, s{sOB}, {WS_P}")
    A(f"s_lshl_b32 s{sT1}, s{sWAVE}, {10 if BF else 11}\ns_add_u32 s{sOB}, s{sOB}, s{sT1}")
    A(f"s_mul_i32 s{sT0}, s{sXC}, {SS}\ns_add_u32 s{sT0}, s{sT0}, s{sOB}")
    A("s_nop 7\ns_nop 3")
    if BF:
        for r in range(8):
            src = vO + 8 * r
            d = vKF + 4 * r
            for j in range(4):
                A(f"v_cvt_pk_bf16_f32 v{d+j}, v{src+2*j}, v{src+2*j+1}")
            A(f"buffer_store_dwordx4 {vr(d,4)}, v{vL16}, s[{sWS}:{sWS+3}], s{sT0} offen sc1")
            A(f"s_add_u32 s{sT0}, s{sT0}, {RS}")
    else:
        for T in range(4):
            for i in range(4):
                A(f"buffer_store_dwordx4 {vr(vO+16*T+4*i,4)}, v{vL16}, s[{sWS}:{sWS+3}], s{sT0} offen offset:{(i%2)*1024} sc1")
                if i % 2 == 1: A(f"s_add_u32 s{sT0}, s{sT0}, 49152")
    publish(2)
    stamp_at(A, stamp == 9, 3)
    A(f"s_mul_i32 s{sT0}, s{sXC}, {RS}\ns_add_u32 s{sOB}, s{sOB}, s{sT0}")
    A(f"s_add_u32 s{sT3}, s{sWAVE}, 16")
    A("K1_ZP:")
    A(f"ds_read_b64 v[{vF0}:{vF0+1}], v{vFL} offset:48\ns_waitcnt lgkmcnt(0)\nv_readfirstlane_b32 s{sF}, v{vF0}\nv_readfirstlane_b32 s{sF+1}, v{vF0+1}")
    A(f"s_lshr_b64 s[{sF}:{sF+1}], s[{sF}:{sF+1}], s{sT3}\ns_and_b32 s{sT2}, s{sF}, 0x11111111\ns_cmp_eq_u32 s{sT2}, 0x11111111\ns_cbranch_scc0 K1_ZP")
    A("K1_ZG:")
    stamp_at(A, stamp == 9, 4)
    for x in range(8):
        if BF:
            A(f"buffer_load_dwordx4 {vr(96+4*x,4)}, v{vL16}, s[{sWS}:{sWS+3}], s{sOB} offen sc1")
        else:
            for e in range(2):
                A(f"buffer_load_dwordx4 {vr(160+8*x+4*e,4)}, v{vL16}, s[{sWS}:{sWS+3}], s{sOB} offen offset:{e*1024} sc1")
        A(f"s_add_u32 s{sOB}, s{sOB}, {SS}")
    A("v_and_b32 v3, 31, v0\nv_lshlrev_b32 v3, 10, v3\nv_lshrrev_b32 v16, 5, v0\nv_lshl_add_u32 v3, v16, 3, v3")
    A(f"s_lshl_b32 s{sT0}, s{sHQ}, 8\ns_lshl_b32 s{sT1}, s{sXC}, 5\ns_add_u32 s{sT0}, s{sT0}, s{sT1}\ns_add_u32 s{sT0}, s{sT0}, s{sXG}")
    if BF:
        A(f"s_mov_b32 s{sT1}, 0xffff0000")
        for x in range(8):
            A(f"s_waitcnt vmcnt({7 - x})")
            for j in range(4):
                if x == 0:
                    A(f"v_lshlrev_b32 v{160+2*j}, 16, v{96+j}\nv_and_b32 v{161+2*j}, s{sT1}, v{96+j}")
                else:
                    A(f"v_lshlrev_b32 v170, 16, v{96+4*x+j}\nv_and_b32 v171, s{sT1}, v{96+4*x+j}\nv_add_f32 v{160+2*j}, v{160+2*j}, v170\nv_add_f32 v{161+2*j}, v{161+2*j}, v171")
    else:
        for x in range(1, 8):
            A(f"s_waitcnt vmcnt({14 - 2*x})")
            for r in range(8):
                A(f"v_add_f32 v{160+r}, v{160+r}, v{160+8*x+r}")
    for e in range(2):
        A(f"v_cvt_pk_bf16_f32 v{240+2*e}, v{160+4*e}, v{161+4*e}\nv_cvt_pk_bf16_f32 v{241+2*e}, v{162+4*e}, v{163+4*e}")
        A(f"buffer_store_dwordx2 {vr(240+2*e,2)}, v3, s[{sOUT}:{sOUT+3}], s{sT0} offen offset:{e*16}")
    if stamp: A(f"s_add_u32 s{sWAVE}, s{sWAVE}, 1")
    A("s_branch K1_FIN")
    for tag in range(9):
        par = tag % 2 if tag < 8 else 1
        A(f"K1_RARE{tag}:")
        A(f"s_call_b64 s[{sT0}:{sT1}], K1_RAREP{par}")
        A(f"s_branch K1_CK{tag}")
    for par in range(2): rare(par)

    A("K1_LOADER:")
    vDKc = 4; vDK = 8; vDV, vDW = 16, 17; vDO = 12
    A("v_mov_b32 v20, 0\nv_mov_b32 v21, 0\nv_mov_b32 v22, 0\nv_mov_b32 v23, 0")
    A(f"ds_write_b128 v{vFL}, v[20:23]\nds_write_b128 v{vFL}, v[20:23] offset:16\nds_write_b128 v{vFL}, v[20:23] offset:32\nds_write_b128 v{vFL}, v[20:23] offset:48")
    A("v_xor_b32 v3, v2, v1")
    for n in range(4):
        A(f"v_xor_b32 v{vDKc+n}, {4*n}, v3\nv_lshlrev_b32 v{vDKc+n}, 4, v{vDKc+n}\nv_lshl_add_u32 v{vDK+n}, v1, 8, v{vDKc+n}")
    A("v_lshlrev_b32 v3, 2, v1\nv_xor_b32 v3, v3, v2\nv_lshlrev_b32 v3, 4, v3")
    A(f"v_lshl_add_u32 v{vDV}, v1, 8, v3\nv_lshl_add_u32 v{vDW}, v1, 13, v3\nv_lshl_add_u32 v{vDO}, v1, 10, v3")
    A(f"s_lshl_b32 s{sKVOFF}, s{sB}, 5\ns_add_u32 s{sKVOFF}, s{sKVOFF}, s{sH}\ns_lshl_b32 s{sKVOFF}, s{sKVOFF}, 18")
    A(f"s_lshl_b32 s{sWQG}, s{sH}, 8\ns_mov_b32 s{sSEEN}, 0")
    A("s_waitcnt lgkmcnt(0)\ns_barrier")
    srd(A, sWQ, 10, 11, 4 << 20)
    srd(A, sK, 6, 7, 64 << 20)
    srd(A, sV, 8, 9, 64 << 20)
    srd(A, sWS, 18, 19, 256 << 20)
    srd(A, sWO, 12, 13, 4 << 20)
    vt = VmTrack(A)
    vLW = 24; vLD = 26; vLF = 28
    A(f"v_lshlrev_b32 v{vLW}, 4, v0\nv_add_u32 v{vLW+1}, {LV}, v{vLW}")
    def pub(off, val):
        A(f"v_mov_b32 v{vLD}, {val}\nds_write_b32 v{vFL}, v{vLD} offset:{off}")
    def wait_prog(val):
        if val <= 0: return
        Lb = newlab("P")
        A(f"s_cmp_ge_u32 s{sSEEN}, {val}\ns_cbranch_scc1 {Lb}_OK")
        A(f"{Lb}:")
        A(f"ds_read_b96 {vr(vLF,3)}, v{vFL} offset:16\ns_waitcnt lgkmcnt(0)")
        A(f"v_min3_u32 v{vLF}, v{vLF}, v{vLF+1}, v{vLF+2}\ns_nop 0\nv_readfirstlane_b32 s{sSEEN}, v{vLF}")
        A(f"s_cmp_ge_u32 s{sSEEN}, {val}\ns_cbranch_scc0 {Lb}")
        A(f"{Lb}_OK:")
    def piece(name):
        j = int(name[1])
        A(f"s_add_u32 s{sT1}, s{sWQG}, {j*64*8192}")
        for n in range(16):
            A(f"s_mov_b32 m0, {WB[j%6][n//8] + (n%8)*1024}")
            A(f"s_add_u32 s{sT1}, s{sT1}, {4*8192}" if n else "s_nop 0")
            A(f"buffer_load_dwordx4 v{vDW}, s[{sWQ}:{sWQ+3}], s{sT1} offen{' nt' if opt.get('wqnt', 1) else ''} lds")
            vt.issue(name)
    qpub = [0]
    def last_idx(tag): return max(i for i, t in enumerate(vt.ops) if t == tag)
    def pub_q():
        k = qpub[0]
        while k < len(SEQ) and SEQ[k] in vt.ops and last_idx(SEQ[k]) <= vt.done: k += 1
        if k > qpub[0]:
            pub(4, k); qpub[0] = k
    def settle(n):
        if len(vt.ops) - 1 - vt.done > n:
            A(f"s_waitcnt vmcnt({n})"); vt.done = len(vt.ops) - 1 - n
        pub_q()
    def parts(u):
        p = []
        if u <= 31: p.append((sK, LK, True, u))
        if u >= 1: p.append((sV, LV, False, u - 1))
        return p
    def dma_unit(u):
        slot = u % 8
        for (srdb, lbase, isk, tile) in parts(u):
            for g in range(2):
                A(f"s_mov_b32 m0, {lbase + slot*8192 + g*4096}\ns_add_u32 s{sT2}, s{sKVOFF}, {tile*8192 + g*4096}")
                for n in range(4):
                    vo = vDK + n if isk else vDV
                    A(f"buffer_load_dwordx4 v{vo}, s[{srdb}:{srdb+3}], s{sT2} offen offset:{n*1024}{NT} lds")
                    vt.issue(("u", u))
    def rbuf(u, i):
        f = (u - 1) % 7
        if f < 3:
            b = 32 + f * 64 + 4 * i
            return f"v[{b}:{b+3}]"
        b = (f - 3) * 64 + 4 * i
        return f"a[{b}:{b+3}]"
    def reg_unit(u, pace=None):
        for pi, (srdb, lbase, isk, tile) in enumerate(parts(u)):
            for g in range(2):
                if pace is not None: settle(pace)
                A(f"s_add_u32 s{sT2}, s{sKVOFF}, {tile*8192 + g*4096}")
                for n in range(4):
                    vo = vDK + n if isk else vDV
                    A(f"buffer_load_dwordx4 {rbuf(u, pi*8+g*4+n)}, v{vo}, s[{srdb}:{srdb+3}], s{sT2} offen offset:{n*1024}{NT}")
                    vt.issue(("u", u))
    def dump_unit(u):
        slot = u % 8
        for pi in range(2):
            for i in range(8):
                A(f"ds_write_b128 v{vLW+pi}, {rbuf(u, pi*8+i)} offset:{slot*8192 + i*1024}")
        A("s_waitcnt lgkmcnt(0)")
    QN = opt.get("qn", 40)
    def qblock():
        for i, p in enumerate(SEQ):
            if p in PCOND:
                vt.wait(SEQ[need(PCOND[p]) - 1]); pub_q()
                wait_prog(PCOND[p])
            piece(p)
            if i >= 2: settle(QN)
    PB = opt.get("paceb", 44)
    W = opt.get("win", 3)
    JOIN = 15
    A(f"s_cmp_eq_u32 s{sGRP}, 1\ns_cbranch_scc1 K1_LB")
    qblock()
    upub = [0]
    def pub_u(upto):
        if upto > upub[0]:
            vt.wait(("u", upto - 1)); pub_q(); pub(0, upto); upub[0] = upto
    for u in range(JOIN + W):
        if u < 8:
            c = UCOND[u]
            if c > 0:
                vt.wait(SEQ[need(min(c, 7)) - 1]); pub_q()
        else:
            c = QD + u - 7
        wait_prog(c)
        dma_unit(u)
        if u <= 2:
            vt.wait(SEQ[{0: 6, 1: 7, 2: 8}[u] - 1]); pub_q()
        if u >= W: pub_u(u - W + 1)
    assert upub[0] == JOIN
    A("s_branch K1_LJ")
    A("K1_LB:")
    vt.ops = []; vt.done = -1; qpub[0] = 0
    dma_unit(0)
    for u in range(1, 8): reg_unit(u, PB)
    pub(8, 1)
    qblock()
    pub(0, 1)
    for k in range(qpub[0] + 1, len(SEQ) + 1):
        vt.wait(SEQ[k - 1]); pub_q()
    for u in range(1, JOIN):
        wait_prog(UCOND[u] if u < 8 else QD + u - 7)
        vt.wait(("u", u))
        dump_unit(u)
        pub(0, u + 1)
        if u <= 7: reg_unit(u + 7)
        nu = u + W
        if nu >= JOIN:
            wait_prog(QD + nu - 7)
            dma_unit(nu)
    A("K1_LJ:")
    vt.ops = [("u", u) for u in range(JOIN, JOIN + W) for _ in range(16)]; vt.done = -1; qpub[0] = len(SEQ)
    sWOF = 57
    def wo_chunk(c):
        hs = c // 2
        if c % 2 == 0:
            A(f"s_add_u32 s{sWOF}, s{sHQ}, {hs}\ns_and_b32 s{sWOF}, s{sWOF}, 3\ns_lshl_b32 s{sT0}, s{sXC}, 2\ns_add_u32 s{sWOF}, s{sWOF}, s{sT0}")
            A(f"s_lshl_b32 s{sWOF}, s{sWOF}, 17\ns_lshl_b32 s{sT0}, s{sHQ}, 8\ns_add_u32 s{sWOF}, s{sWOF}, s{sT0}")
        base = 128 * KB if c == 0 else (hs * 16 * KB if c % 2 else 56 * KB + hs * 16 * KB)
        if c >= 1: wait_prog(QD + 25 + c if c < opt.get('wlate', 5) else QD + 33)
        for n in range(16):
            A(f"s_mov_b32 m0, {base + n*1024}\ns_nop 0")
            A(f"buffer_load_dwordx4 v{vDO}, s[{sWO}:{sWO+3}], s{sWOF} offen{' nt' if opt.get('wont', 1) else ''} lds")
            A(f"s_add_u32 s{sWOF}, s{sWOF}, 4096")
            vt.issue(("c", c))
    wpub = [0]
    def pub_w():
        k = wpub[0]
        while k < 8 and ("c", k) in vt.ops and last_idx(("c", k)) <= vt.done: k += 1
        if k > wpub[0]:
            pub(36, k); wpub[0] = k
    SCHED = {29: [0], 30: [1], 31: [2], 32: [3, 4, 5, 6, 7]}
    sD2 = 92
    for u in range(JOIN, 33):
        vt.wait(("u", u))
        pub(0, u + 1)
        nu = u + W
        if nu <= 32:
            wait_prog(QD + nu - 7)
            dma_unit(nu)
        if u == 29:
            srd(A, sD2, 16, 17, 256)
            A(f"v_lshlrev_b32 v21, 2, v0\ns_mov_b32 s{sTO}, 0\ns_mov_b32 s{sT3}, 0x01010101")
            A(f"buffer_load_dword v22, v21, s[{sD2}:{sD2+3}], 0 offen sc1"); vt.issue("a")
        if u == 32:
            vt.wait("a")
            A("K1_ALLW:")
            A(f"v_cmp_ne_u32 vcc, s{sT3}, v22\ns_cbranch_vccz K1_ALLOK")
            A(f"s_sleep 8\nbuffer_load_dword v22, v21, s[{sD2}:{sD2+3}], 0 offen sc1\ns_waitcnt vmcnt(0)")
            A(f"s_add_u32 s{sTO}, s{sTO}, 1\ns_cmp_lt_u32 s{sTO}, {TMO}\ns_cbranch_scc1 K1_ALLW")
            A("K1_ALLOK:")
            pub(44, 1)
        for c in SCHED.get(u, []):
            wo_chunk(c)
            if u == 32:
                vt.wait(("c", c - 2)); pub_w()
    stamp_at(A, stamp == 1, 5)
    A(f"buffer_load_ubyte v20, v0, s[{sWS}:{sWS+3}], s{sMB} offen sc1"); vt.issue("m")
    for c in (6, 7):
        vt.wait(("c", c)); pub_w()
    A("s_waitcnt vmcnt(0)")
    A(f"v_cmp_ne_u32 vcc, 0, v20\ns_nop 1\nv_mov_b32 v23, vcc_lo\nds_write_b32 v{vFL}, v23 offset:48")
    A(f"s_mov_b32 s{sTO}, 0\ns_mov_b32 s{sT2}, 0x77777777")
    A("K1_PZ:")
    A(f"buffer_load_ubyte v22, v0, s[{sWS}:{sWS+3}], s{sMB} offen sc1\ns_waitcnt vmcnt(0)")
    A(f"v_cmp_ne_u32 vcc, 0, v22\ns_nop 1\nv_mov_b32 v22, vcc_lo\nv_mov_b32 v23, vcc_hi\ns_and_b32 s{sT0}, vcc_lo, s{sT2}\ns_and_b32 s{sT1}, vcc_hi, 0x7777\nds_write_b64 v{vFL}, v[22:23] offset:48")
    A(f"s_cmp_eq_u32 s{sT0}, s{sT2}\ns_cselect_b32 s{sT0}, s{sT1}, 0\ns_cmp_eq_u32 s{sT0}, 0x7777\ns_cbranch_scc1 K1_FIN")
    A(f"s_add_u32 s{sTO}, s{sTO}, 1\ns_cmp_lt_u32 s{sTO}, {TMO}\ns_cbranch_scc1 K1_PZ")
    A(f"v_mov_b32 v22, -1\nv_mov_b32 v23, -1\nds_write_b64 v{vFL}, v[22:23] offset:48")
    A("K1_FIN:")
    if stamp:
        stamp_store(A, sWS, sT0, f"s_lshl_b32 s{sT0}, s2, 2\ns_add_u32 s{sT0}, s{sT0}, s{sWAVE}", WS_STAMP)
    A("K1_END:\ns_endpgm")

def main(stamp=0, opt=None):
    A = Asm()
    A.raw(f"; @launch grid=(256,1,1) block=(256,1,1) lds={LDS_BYTES}")
    A.raw('.amdgcn_target "amdgcn-amd-amdhsa--gfx950"\n.text')
    A.raw(f".globl {KN}\n.type {KN},@function")
    gen(A, stamp, opt)
    A.raw('.section .rodata,"a"')
    A.raw(kd(KN, 512, 256))
    return A.text()

if __name__ == "__main__":
    stamp = 0
    opt = {}
    for a in sys.argv[1:]:
        if a.startswith("--stamp"): stamp = int(a[7:] or 1)
        elif a.startswith("--") and "=" in a:
            k, v = a[2:].split("="); opt[k] = int(v)
    out = [a for a in sys.argv[1:] if not a.startswith("--")][0]
    open(out, "w").write(main(stamp, opt))
```

```python
import sys, struct
from gen1 import Asm, vr, f32bits, srd, VmTrack, stamp_at, stamp_store, kd, WS_STAMP, SCALE_LOG2E, THRESH

KN = "standalone__gqa_block_cached__near_ridge_kernel"
KB = 1024
LK = 0
LV = 64 * KB
WB = [(128*KB, 136*KB), (144*KB, 64*KB), (8*KB, 16*KB), (72*KB, 80*KB), (24*KB, 32*KB), (88*KB, 96*KB)]
XB = [40 * KB, 104 * KB]
FL = 152 * KB
LDS_BYTES = 160 * KB
WS_O = 0
WS_MB = 7 << 20
WS_P = 32 << 20
QD = 8
NT = " nt"
SEQ = [f"w{i}" for i in range(8)]
PCOND = {"w6": 1, "w7": 2}
def need(hc): return hc + 1
UCOND = {0: 0, 1: 4, 2: 4, 3: 6, 4: 6, 5: 6, 6: 6, 7: 6}
TMO = 0x40000

def gen(A, stamp=0, opt=None):
    opt = opt or {}
    sX, sK, sV, sWQ, sWO, sWS = 20, 24, 28, 32, 36, 40
    sDBG, sOUT = 24, 28
    sWAVE, sB, sH = 44, 45, 46
    sKVOFF = 47
    sT0, sT1, sT2, sT3 = 48, 49, 50, 51
    sC, sTHR = 52, 53
    sXG = 54; sWQG = 55
    sTILE = 58; sSEEN = 59
    sGRP = 62
    sXC, sHQ = 80, 81
    sF, sP, sI, sMB, sTO, sLB, sOB = 82, 83, 84, 85, 86, 87, 88
    lab = [0]
    def newlab(p):
        lab[0] += 1
        return f"K1_{p}{lab[0]}"
    A.raw(f".p2align 8\n{KN}:")
    A("s_cmp_ge_u32 s2, 256\ns_cbranch_scc1 K1_END")
    if stamp:
        for i in range(8): A(f"s_mov_b64 s[{64+2*i}:{65+2*i}], 0")
    stamp_at(A, stamp, 0)
    A("s_load_dwordx16 s[4:19], s[0:1], 0")
    A("v_lshrrev_b32 v1, 6, v0\nv_and_b32 v0, 63, v0\ns_nop 0")
    A(f"v_readfirstlane_b32 s{sWAVE}, v1")
    A(f"s_and_b32 s{sXC}, s2, 7\ns_lshr_b32 s{sT1}, s2, 3\ns_and_b32 s{sHQ}, s{sT1}, 3")
    A(f"s_lshl_b32 s{sH}, s{sXC}, 2\ns_add_u32 s{sH}, s{sH}, s{sHQ}\ns_lshr_b32 s{sB}, s{sT1}, 2")
    if opt.get("gtype", 0) == 0: A(f"s_add_u32 s{sGRP}, s{sB}, s{sH}\ns_and_b32 s{sGRP}, s{sGRP}, 1")
    else: A(f"s_and_b32 s{sGRP}, s{sB}, 1")
    A(f"s_lshl_b32 s{sMB}, s2, 7\ns_add_u32 s{sMB}, s{sMB}, {WS_MB}")
    A("v_lshrrev_b32 v1, 4, v0\nv_and_b32 v2, 15, v0")
    vFL = 18
    A(f"v_mov_b32 v{vFL}, {FL}")
    A(f"s_cmp_eq_u32 s{sWAVE}, 0\ns_cbranch_scc1 K1_LOADER")

    A(f"s_sub_u32 s{sWAVE}, s{sWAVE}, 1")
    vDX = 64
    A("v_xor_b32 v3, v2, v1")
    for n in range(4):
        A(f"v_xor_b32 v{vDX+n}, {4*n}, v3\nv_lshlrev_b32 v{vDX+n}, 4, v{vDX+n}\nv_lshl_add_u32 v{vDX+n}, v1, 10, v{vDX+n}")
    A(f"s_mul_i32 s{sXG}, s{sB}, 96\ns_lshl_b32 s{sT0}, s{sWAVE}, 5\ns_add_u32 s{sXG}, s{sXG}, s{sT0}\ns_lshl_b32 s{sXG}, s{sXG}, 10")
    A(f"s_lshl_b32 s56, s{sWAVE}, 13")
    A("s_waitcnt lgkmcnt(0)\ns_barrier")
    srd(A, sX, 4, 5, 8*96*512*2)
    srd(A, sWS, 18, 19, 256 << 20)
    srd(A, sDBG, 16, 17, 256)
    srd(A, sOUT, 14, 15, 8*96*512*2)
    A("v_and_b32 v70, 31, v0\nv_lshlrev_b32 v70, 2, v70\nv_mov_b32 v71, 0")
    A(f"s_cmp_eq_u32 s{sWAVE}, 0\ns_cbranch_scc0 K1_NOCLR")
    A(f"buffer_store_dword v71, v70, s[{sWS}:{sWS+3}], s{sMB} offen sc1")
    A("K1_NOCLR:")
    A(f"s_cmp_eq_u32 s{sGRP}, 0\ns_cbranch_scc1 K1_QGO")
    A("K1_QW:")
    A(f"s_sleep 2\nds_read_b32 v58, v{vFL} offset:8\ns_waitcnt lgkmcnt(0)\nv_readfirstlane_b32 s{sT3}, v58")
    A(f"s_cmp_eq_u32 s{sT3}, 0\ns_cbranch_scc1 K1_QW")
    A("K1_QGO:")
    vtc = VmTrack(A)
    def xops(j):
        ops = []
        for n in range(8):
            pre = f"s_add_u32 s57, s{sXG}, {j*256 + n*4096}\ns_add_u32 s60, s56, {XB[j%2] + n*1024}\ns_mov_b32 m0, s60\ns_nop 0\n"
            ops.append(pre + f"buffer_load_dwordx4 v{vDX+n%4}, s[{sX}:{sX+3}], s57 offen{' nt' if opt.get('xnt', 0) else ''} lds")
        return ops
    for j in range(2):
        for op in xops(j):
            A(op); vtc.issue(j)
    vKA = 20; vVA = 28
    vNMC, vL, vTS, vTMP, vTMP2, vAL = 48, 49, 50, 51, 52, 53
    vL16 = 54; vPG = 55; vPA = 56
    vF0 = 58
    vQ = 64; vO = 96
    vXA = [32, 40]
    vWA = [4, 8, 12]
    vS = [160, 176]
    vP = 192; vPK = 208; vKF = 216
    aVF = 0
    A(f"s_mov_b32 s{sC}, {hex(f32bits(SCALE_LOG2E))}\ns_mov_b32 s{sTHR}, {hex(f32bits(THRESH))}")
    A("v_and_b32 v3, 31, v0\nv_lshrrev_b32 v19, 5, v0")
    A("v_and_b32 v60, 15, v3\nv_xor_b32 v60, v60, v19\nv_lshlrev_b32 v60, 4, v60")
    A(f"v_lshl_add_u32 v{vKA}, v3, 8, v60")
    for s in range(1, 8):
        A(f"v_xor_b32 v{vKA+s}, {32*s}, v{vKA}")
    A(f"s_add_u32 s{sT1}, s56, {XB[1]}\ns_add_u32 s{sT0}, s56, {XB[0]}")
    for s in range(8):
        A(f"v_add_u32 v{vXA[0]+s}, s{sT0}, v{vKA+s}\nv_add_u32 v{vXA[1]+s}, s{sT1}, v{vKA+s}")
    A("v_lshrrev_b32 v60, 2, v2")
    A("v_and_b32 v61, 1, v1\nv_lshlrev_b32 v61, 5, v61")
    A("v_and_b32 v62, 3, v2\nv_lshlrev_b32 v62, 3, v62")
    A("v_add_u32 v61, v61, v62")
    for T in range(4):
        A(f"v_xor_b32 v62, {T}, v60\nv_lshl_add_u32 v62, v62, 6, v61")
        A(f"v_lshl_add_u32 v63, v19, 2, v60\nv_lshl_add_u32 v{vVA+T}, v63, 8, v62")
        A(f"v_add_u32 v{vVA+T}, {LV}, v{vVA+T}")
        A(f"v_lshl_add_u32 v63, v19, 3, v60\nv_lshl_add_u32 v{vWA[0]+T}, v63, 8, v62")
        A(f"v_add_u32 v{vWA[1]+T}, {64*KB}, v{vWA[0]+T}\nv_add_u32 v{vWA[2]+T}, {128*KB}, v{vWA[0]+T}")
    A(f"v_lshlrev_b32 v{vL16}, 4, v0")
    A(f"s_lshl_b32 s{sT0}, s{sWAVE}, 2\ns_add_u32 s{sT0}, s{sT0}, {FL+16}\nv_mov_b32 v{vPA}, s{sT0}")
    A(f"s_mov_b32 s{sSEEN}, 0")

    def wait_flag_ops(off, val):
        L = newlab("L")
        return "\n".join([
            f"s_cmp_ge_u32 s{sSEEN}, {val}\ns_cbranch_scc1 {L}_OK",
            f"{L}:",
            f"ds_read_b32 v{vF0}, v{vFL} offset:{off}\ns_waitcnt lgkmcnt(0)\nv_readfirstlane_b32 s{sSEEN}, v{vF0}",
            f"s_cmp_ge_u32 s{sSEEN}, {val}\ns_cbranch_scc0 {L}",
            f"{L}_OK:"])

    AB = [vS[0], vS[1], vP]
    lops = []
    def L(op, tag):
        A(op); lops.append(tag)
    def lwait(tag):
        idx = max(i for i, t in enumerate(lops) if t == tag)
        A(f"s_waitcnt lgkmcnt({min(15, len(lops) - 1 - idx)})")
    def rd(g):
        hc, s4 = g // 4, g % 4
        base = AB[g % 3]
        wb = WB[hc % 6][s4 // 2] + (s4 % 2) * 16 * 256
        reg = vWA[wb // (64*KB)]; off = wb % (64*KB)
        return [f"ds_read_b64_tr_b16 {vr(base+4*T+2*t,2)}, v{reg+T} offset:{off + 4*t*256}" for T in range(4) for t in range(2)]
    aX = 32
    def xrd(j): return [f"ds_read_b128 a[{aX+32*j+4*s}:{aX+32*j+4*s+3}], v{vXA[j%2]+s}" for s in range(8)]
    vtc.wait(0)
    for op in xrd(0): A(op)
    vtc.wait(1)
    for op in xrd(1): A(op)
    A("s_waitcnt lgkmcnt(0)")
    for j in (2, 3):
        for op in xops(j):
            A(op); vtc.issue(j)
    A(wait_flag_ops(4, need(0)))
    xq = []
    for op in rd(0): L(op, 0)
    for op in rd(1): L(op, 1)
    for g in range(32):
        lwait(g)
        if g % 4 == 3:
            A(f"v_mov_b32 v{vPG}, {g//4+1}")
            L(f"ds_write_b32 v{vPA}, v{vPG}", "p")
        if g == 9:
            vtc.wait(3); xq += xrd(2) + xrd(3)
            A(f"s_cmp_eq_u32 s{sWAVE}, 0\ns_cbranch_scc0 K1_NORDY")
            A(f"v_mov_b32 v70, 0\nv_mov_b32 v71, 1\ns_mov_b64 exec, 1\nbuffer_store_byte v71, v70, s[{sDBG}:{sDBG+3}], s2 offen sc1\ns_mov_b64 exec, -1")
            A("K1_NORDY:")
        base = AB[g % 3]
        nx = rd(g + 2) if g + 2 < 32 else []
        for T in range(4):
            c = "0" if g == 0 else vr(vO+16*T,16)
            A(f"v_mfma_f32_32x32x16_bf16 {vr(vO+16*T,16)}, {vr(base+4*T,4)}, a[{aX+4*g}:{aX+4*g+3}], {c}")
            if T == 0 and nx and (g + 2) % 4 == 0:
                A(wait_flag_ops(4, need((g + 2) // 4)))
            for op in nx[2*T:2*T+2]: L(op, g + 2)
            if xq: L(xq.pop(0), "x")
    stamp_at(A, stamp == 1, 1)
    A(f"s_mov_b32 s{sSEEN}, 0\ns_mov_b32 s{sTILE}, 1")
    def wait_landed_ops():
        return wait_flag_ops(0, f"s{sTILE}") + f"\ns_add_u32 s{sTILE}, s{sTILE}, 1"
    def kreads(slot):
        return [f"ds_read_b128 {vr(vKF+4*s,4)}, v{vKA+s} offset:{LK+slot*8192}" for s in range(8)]
    A(wait_landed_ops())
    for op in kreads(0): A(op)
    A("s_nop 7")
    for s in range(8):
        T, hh = s // 2, s % 2
        src = vO + 16 * T + 8 * hh
        d = vQ + 4 * s
        for j in range(4):
            A(f"v_cvt_pk_bf16_f32 v{d+j}, v{src+2*j}, v{src+2*j+1}")
        A("s_nop 1")
        A(f"v_permlane32_swap_b32 v{d}, v{d+2}")
        A(f"v_permlane32_swap_b32 v{d+1}, v{d+3}")

    def consumed():
        A(f"v_add_u32 v{vPG}, 1, v{vPG}\nds_write_b32 v{vPA}, v{vPG}")
    NE1 = 10
    def fma_ops(Sc): return [f"v_fma_f32 v{vP+r}, v{Sc+r}, s{sC}, v{vNMC}" for r in range(16)]
    def exp_ops(): return [f"v_exp_f32 v{vP+r}, v{vP+r}" for r in range(16)]
    def sum_ops():
        ops = [f"v_add_f32 v{vTS}, v{vP}, v{vP+1}", f"v_add_f32 v{vTMP}, v{vP+2}, v{vP+3}"]
        for r in range(4, 16, 2):
            ops += [f"v_add_f32 v{vTS}, v{vTS}, v{vP+r}", f"v_add_f32 v{vTMP}, v{vTMP}, v{vP+r+1}"]
        ops.append(f"v_add_f32 v{vTS}, v{vTS}, v{vTMP}")
        return ops
    def part1(Sc):
        fm, ex = fma_ops(Sc), exp_ops()[:NE1]
        seq = fm[:4]; rest = fm[4:]
        for i in range(max(len(rest), len(ex))):
            if i < len(ex): seq.append(ex[i])
            if i < len(rest): seq.append(rest[i])
        return seq
    def cost(op):
        if op.startswith("v_exp"): return 8
        if op.startswith("ds_"): return 8
        return 4 * (op.count("\n") + 1) if not op.startswith("s_cmp") else 12
    def interleave(mfmas, fillers):
        tot = sum(cost(o) for o in fillers)
        n = len(mfmas)
        if n == 0:
            for op in fillers: A(op)
            return
        acc = 0; k = 0
        for i, m in enumerate(mfmas):
            A(m)
            tgt = tot * (i + 1) / n
            while k < len(fillers) and (acc + cost(fillers[k]) / 2 <= tgt or i == n - 1):
                A(fillers[k]); acc += cost(fillers[k]); k += 1
    def qk(Sn):
        return [f"v_mfma_f32_32x32x16_bf16 {vr(Sn,16)}, {vr(vKF+4*s,4)}, {vr(vQ+4*s,4)}, {'0' if s == 0 else vr(Sn,16)}" for s in range(8)]

    A("s_waitcnt lgkmcnt(0)")
    z = [f"v_mov_b32 v{vO+r}, 0" for r in range(64)] + [f"v_mov_b32 v{vNMC}, 0x7f800000", f"v_mov_b32 v{vL}, 0"]
    interleave(qk(vS[0]), z)
    consumed()
    A(wait_landed_ops())
    for op in kreads(1): A(op)
    A("s_nop 7")
    for op in part1(vS[0]): A(op)

    def iteration(tag, k, last):
        par = k % 2
        Sc, Sn = vS[par], vS[par ^ 1]
        vslot = (k + 1) % 8
        A("s_waitcnt lgkmcnt(0)")
        vrd = [f"ds_read_b64_tr_b16 a[{aVF+16*u+4*T+2*t}:{aVF+16*u+4*T+2*t+1}], v{vVA+T} offset:{vslot*8192+(16*u+8*t)*256}"
               for u in range(2) for T in range(4) for t in range(2)]
        ex = exp_ops()[NE1:]
        f = []
        rest = ex + ["s_nop 0"] + sum_ops()
        ri = 0
        for i in range(16):
            f.append(vrd[i])
            if i % 2 == 1:
                take = 1 if ri < len(ex) else 3
                f += rest[ri:ri+take]; ri += take
        f += rest[ri:]
        f.append(f"v_cmp_nge_f32 vcc, s{sTHR}, v{vTS}\ns_cbranch_vccnz K1_RARE{tag}\nK1_CK{tag}:")
        f.append(f"v_add_f32 v{vL}, v{vL}, v{vTS}")
        f += [f"v_cvt_pk_bf16_f32 v{vPK+j}, v{vP+2*j}, v{vP+2*j+1}" for j in range(8)]
        interleave([] if last else qk(Sn), f)
        A("s_waitcnt lgkmcnt(0)")
        if not last: consumed()
        else: A("s_nop 0")
        pv = [f"v_mfma_f32_32x32x16_bf16 {vr(vO+16*T,16)}, a[{aVF+16*u+4*T}:{aVF+16*u+4*T+3}], {vr(vPK+4*u,4)}, {vr(vO+16*T,16)}"
              for u in range(2) for T in range(4)]
        if last:
            A("s_nop 0")
            for m in pv: A(m)
            return
        p1 = part1(Sn)
        h = 10
        kr = kreads((k + 2) % 8)
        tail = []
        r2 = p1[h:]
        for i in range(8):
            tail.append(kr[i])
            if i % 2 == 1: tail += r2[:2]; r2 = r2[2:]
        tail += r2
        f = ["s_nop 3"] + p1[:h] + [wait_landed_ops()] + tail
        interleave(pv, f)

    def rare(par):
        Sc = vS[par]
        A(f"K1_RAREP{par}:")
        A(f"v_max3_f32 v{vTMP}, v{Sc}, v{Sc+1}, v{Sc+2}")
        for r in range(3, 15, 2):
            A(f"v_max3_f32 v{vTMP}, v{vTMP}, v{Sc+r}, v{Sc+r+1}")
        A(f"v_max_f32 v{vTMP}, v{vTMP}, v{Sc+15}")
        A(f"v_mov_b32 v{vTMP2}, v{vTMP}\ns_nop 1\nv_permlane32_swap_b32 v{vTMP}, v{vTMP2}\nv_max_f32 v{vTMP}, v{vTMP}, v{vTMP2}")
        A(f"v_mul_f32 v{vTMP}, s{sC}, v{vTMP}")
        A(f"v_sub_f32 v{vTMP}, 0, v{vTMP}\nv_min_f32 v{vTMP}, v{vNMC}, v{vTMP}")
        A(f"v_sub_f32 v{vAL}, v{vTMP}, v{vNMC}\nv_exp_f32 v{vAL}, v{vAL}\nv_mov_b32 v{vNMC}, v{vTMP}")
        A(f"v_mul_f32 v{vL}, v{vL}, v{vAL}")
        for r in range(64):
            A(f"v_mul_f32 v{vO+r}, v{vO+r}, v{vAL}")
        for op in fma_ops(Sc) + exp_ops(): A(op)
        A("s_nop 0")
        for op in sum_ops(): A(op)
        A(f"s_setpc_b64 s[{sT0}:{sT1}]")

    A("K1_LOOP:")
    for k in range(8):
        if k == 7:
            A(f"s_cmp_eq_u32 s{sTILE}, 34\ns_cbranch_scc1 K1_LAST")
        iteration(k, k, False)
    if stamp == 1:
        for idx, val in ((2, 11), (3, 19), (4, 27)):
            A(f"s_cmp_eq_u32 s{sTILE}, {val}\ns_cbranch_scc0 K1_NS{idx}")
            stamp_at(A, 1, idx)
            A(f"K1_NS{idx}:")
    A("s_branch K1_LOOP")
    A("K1_LAST:")
    iteration(8, 7, True)
    A(f"v_mov_b32 v{vTMP}, v{vL}\ns_nop 1\nv_permlane32_swap_b32 v{vL}, v{vTMP}\nv_add_f32 v{vL}, v{vL}, v{vTMP}")
    A(f"v_rcp_f32 v{vAL}, v{vL}")
    A(f"s_lshl_b32 s{sOB}, s{sB}, 5\ns_lshl_b32 s{sT0}, s{sXC}, 2\ns_add_u32 s{sOB}, s{sOB}, s{sT0}\ns_mul_i32 s{sOB}, s{sOB}, 24576\ns_add_u32 s{sOB}, s{sOB}, s56")
    A(f"s_mul_i32 s{sT0}, s{sHQ}, 24576\ns_add_u32 s{sT0}, s{sT0}, s{sOB}\ns_add_u32 s{sT1}, s{sT0}, 4096")
    A("s_nop 3")
    A(f"s_lshl_b32 s{sT2}, s{sHQ}, 2\ns_lshl_b32 s{sP}, 1, s{sT2}\ns_xor_b32 s{sP}, s{sP}, 0x1111")
    stamp_at(A, stamp in (1,), 6)
    stamp_at(A, stamp in (9, 10), 1)
    tt = VmTrack(A)
    for T in range(4):
        for ip in range(2):
            src = vO + 16 * T + 8 * ip
            blk = 2 * T + ip
            d = vKF + 4 * blk
            for j in range(8):
                A(f"v_mul_f32 v{src+j}, v{src+j}, v{vAL}")
            for j in range(4):
                A(f"v_cvt_pk_bf16_f32 v{d+j}, v{src+2*j}, v{src+2*j+1}")
            A(f"buffer_store_dwordx4 {vr(d,4)}, v{vL16}, s[{sWS}:{sWS+3}], s{sT0 if blk < 4 else sT1} offen offset:{(blk%4)*1024} sc1")
            tt.issue("ost")
    consumed()
    A(f"s_mov_b32 s{sSEEN}, 0")
    A(wait_flag_ops(44, 1))
    A(f"s_mov_b32 s{sSEEN}, 0")
    vTA = 4
    vZ = 8; vFT = 9; vM1 = 10; vM2 = 11; vONE = 12
    A(f"v_and_b32 v{vM1}, 3, v0\nv_lshlrev_b32 v{vM1}, 2, v{vM1}\nv_and_b32 v{vM2}, 7, v0\nv_lshlrev_b32 v{vM2}, 2, v{vM2}\nv_add_u32 v{vM2}, 32, v{vM2}\nv_mov_b32 v{vONE}, 1")

    def publish(which):
        if which == 1:
            A(f"v_and_b32 v16, 3, v0\nv_lshlrev_b32 v16, 10, v16")
            A(f"s_lshl_b32 s{sT0}, s{sB}, 5\ns_add_u32 s{sT0}, s{sT0}, s{sXC}\ns_lshl_b32 s{sT0}, s{sT0}, 7\ns_lshl_b32 s{sT1}, s{sHQ}, 2\ns_add_u32 s{sT0}, s{sT0}, s{sT1}\ns_add_u32 s{sT0}, s{sT0}, {WS_MB}")
            msk = 15
        else:
            A(f"v_and_b32 v16, 7, v0\nv_lshlrev_b32 v16, 7, v16")
            A(f"s_andn2_b32 s{sT0}, s2, 7\ns_lshl_b32 s{sT0}, s{sT0}, 7\ns_lshl_b32 s{sT1}, s{sXC}, 2\ns_add_u32 s{sT0}, s{sT0}, s{sT1}\ns_add_u32 s{sT0}, s{sT0}, {WS_MB + 16}")
            msk = 255
        A(f"s_add_u32 s{sT0}, s{sT0}, s{sWAVE}")
        A("s_waitcnt vmcnt(0)")
        A(f"s_mov_b64 exec, {msk}\nbuffer_store_byte v{vONE}, v16, s[{sWS}:{sWS+3}], s{sT0} offen sc1\ns_mov_b64 exec, -1")

    def peer_load(areg, tag):
        A(f"s_mul_i32 s{sT0}, s{sI}, 24576\ns_add_u32 s{sT0}, s{sT0}, s{sOB}\ns_add_u32 s{sT1}, s{sT0}, 4096")
        for blk in range(8):
            A(f"buffer_load_dwordx4 a[{areg+4*blk}:{areg+4*blk+3}], v{vL16}, s[{sWS}:{sWS+3}], s{sT0 if blk < 4 else sT1} offen offset:{(blk%4)*1024} sc1")
            tt.issue(tag)

    vTB = 20
    def stage(bfrag, first, w0, w4, pre=None):
        A(f"s_sub_u32 s{sT0}, s{sLB}, {16*KB + LV}\ns_add_u32 s{sT1}, s{sLB}, {(128*KB if first else 56*KB) - LV}")
        for T in range(4):
            A(f"v_add_u32 v{vTA+T}, s{sT0}, v{vVA+T}\nv_add_u32 v{vTB+T}, s{sT1}, v{vVA+T}")
        lo = []
        def LL(op, tag): A(op); lo.append(tag)
        def lw(tag):
            idx = max(i for i, t in enumerate(lo) if t == tag)
            A(f"s_waitcnt lgkmcnt({min(15, len(lo) - 1 - idx)})")
        def r2(s):
            ra = vTB if s < 4 else vTA
            return [f"ds_read_b64_tr_b16 {vr(AB[s%3]+4*T+2*t,2)}, v{ra+T} offset:{(16*s+8*t)*256}" for T in range(4) for t in range(2)]
        A(wait_flag_ops(36, w0))
        for op in r2(0): LL(op, 0)
        for op in r2(1): LL(op, 1)
        if pre: pre()
        for s in range(8):
            lw(s)
            nx = r2(s + 2) if s + 2 < 8 else []
            for T in range(4):
                c = "0" if (first and s == 0) else vr(vO+16*T,16)
                A(f"v_mfma_f32_32x32x16_bf16 {vr(vO+16*T,16)}, {vr(AB[s%3]+4*T,4)}, {bfrag(s)}, {c}")
                if T == 0 and s == 2 and w4 is not None: A(wait_flag_ops(36, w4))
                for op in nx[2*T:2*T+2]: LL(op, s + 2)

    own = lambda s: vr(vKF + 4 * s, 4)
    def set_lb(slot): A(f"s_mov_b32 s{sLB}, {slot*16*KB}")
    sN = 89; sLBK = 90
    def read_mask():
        A(f"ds_read_b32 v{vF0}, v{vFL} offset:48\ns_waitcnt lgkmcnt(0)\nv_readfirstlane_b32 s{sF}, v{vF0}\ns_nop 0\ns_lshr_b32 s{sF}, s{sF}, s{sWAVE}")
    def issue_peer(k):
        A(f"s_ff1_i32_b32 s{sI}, s{sT2}\ns_bitset0_b32 s{sP}, s{sI}\ns_lshr_b32 s{sI}, s{sI}, 2")
        peer_load(32 * k, "p")
        A(f"s_sub_u32 s{sLBK+k}, s{sI}, s{sHQ}\ns_and_b32 s{sLBK+k}, s{sLBK+k}, 3\ns_lshl_b32 s{sLBK+k}, s{sLBK+k}, 14")
        A(f"s_mov_b32 s{sN}, {k+1}")
    def try_peer(k):
        Lb = newlab("T")
        A(f"s_cmp_eq_u32 s{sN}, {k}\ns_cbranch_scc0 {Lb}")
        A(f"s_and_b32 s{sT2}, s{sF}, s{sP}\ns_cbranch_scc0 {Lb}")
        issue_peer(k)
        A(f"{Lb}:")
    def block_peer(k):
        Lb = newlab("B")
        A(f"s_cmp_gt_u32 s{sN}, {k}\ns_cbranch_scc1 {Lb}_OK")
        A(f"{Lb}:")
        read_mask()
        A(f"s_and_b32 s{sT2}, s{sF}, s{sP}\ns_cbranch_scc0 {Lb}")
        issue_peer(k)
        A(f"{Lb}_OK:")
    A(f"s_mov_b32 s{sN}, 0")
    publish(1)
    stamp_at(A, stamp == 10, 2)
    read_mask()
    for k in range(3): try_peer(k)
    set_lb(0); stage(own, True, 1, 2)
    stamp_at(A, stamp == 10, 3)
    for k in range(3):
        block_peer(k)
        if k < 2:
            read_mask()
            for k2 in range(k + 1, 3): try_peer(k2)
        def pre(k=k):
            Lb = newlab("W")
            if k == 2:
                A("s_waitcnt vmcnt(0)"); return
            if k == 0:
                A(f"s_cmp_eq_u32 s{sN}, 3\ns_cbranch_scc0 {Lb}_a\ns_waitcnt vmcnt(16)\ns_branch {Lb}_e\n{Lb}_a:")
            A(f"s_cmp_eq_u32 s{sN}, {k+2}\ns_cbranch_scc0 {Lb}_b\ns_waitcnt vmcnt(8)\ns_branch {Lb}_e\n{Lb}_b:\ns_waitcnt vmcnt(0)\n{Lb}_e:")
        A(f"s_mov_b32 s{sLB}, s{sLBK+k}")
        A(f"s_lshr_b32 s{sT3}, s{sLB}, 13\ns_add_u32 s{sT3}, s{sT3}, 2")
        stage(lambda s_, k=k: f"a[{32*k+4*s_}:{32*k+4*s_+3}]", False, f"s{sT3}", None, pre=pre)
        if k < 2: stamp_at(A, stamp == 10, 5 + k)
    A("K1_TZ:")
    stamp_at(A, stamp == 9, 2)
    stamp_at(A, stamp == 10, 4)
    BF = opt.get("bfp", 1)
    RS = 8 * 3072 if BF else 49152
    SS = 3072 if BF else 6144
    A(f"s_lshl_b32 s{sOB}, s{sB}, 2\ns_add_u32 s{sOB}, s{sOB}, s{sHQ}\ns_mul_i32 s{sOB}, s{sOB}, {8*RS}\ns_add_u32 s{sOB}, s{sOB}, {WS_P}")
    A(f"s_lshl_b32 s{sT1}, s{sWAVE}, {10 if BF else 11}\ns_add_u32 s{sOB}, s{sOB}, s{sT1}")
    A(f"s_mul_i32 s{sT0}, s{sXC}, {SS}\ns_add_u32 s{sT0}, s{sT0}, s{sOB}")
    A("s_nop 7\ns_nop 3")
    if BF:
        for r in range(8):
            src = vO + 8 * r
            d = vKF + 4 * r
            for j in range(4):
                A(f"v_cvt_pk_bf16_f32 v{d+j}, v{src+2*j}, v{src+2*j+1}")
            A(f"buffer_store_dwordx4 {vr(d,4)}, v{vL16}, s[{sWS}:{sWS+3}], s{sT0} offen sc1")
            A(f"s_add_u32 s{sT0}, s{sT0}, {RS}")
    else:
        for T in range(4):
            for i in range(4):
                A(f"buffer_store_dwordx4 {vr(vO+16*T+4*i,4)}, v{vL16}, s[{sWS}:{sWS+3}], s{sT0} offen offset:{(i%2)*1024} sc1")
                if i % 2 == 1: A(f"s_add_u32 s{sT0}, s{sT0}, 49152")
    publish(2)
    stamp_at(A, stamp == 9, 3)
    A(f"s_mul_i32 s{sT0}, s{sXC}, {RS}\ns_add_u32 s{sOB}, s{sOB}, s{sT0}")
    A(f"s_add_u32 s{sT3}, s{sWAVE}, 16")
    A("K1_ZP:")
    A(f"ds_read_b64 v[{vF0}:{vF0+1}], v{vFL} offset:48\ns_waitcnt lgkmcnt(0)\nv_readfirstlane_b32 s{sF}, v{vF0}\nv_readfirstlane_b32 s{sF+1}, v{vF0+1}")
    A(f"s_lshr_b64 s[{sF}:{sF+1}], s[{sF}:{sF+1}], s{sT3}\ns_and_b32 s{sT2}, s{sF}, 0x11111111\ns_cmp_eq_u32 s{sT2}, 0x11111111\ns_cbranch_scc0 K1_ZP")
    A("K1_ZG:")
    stamp_at(A, stamp == 9, 4)
    for x in range(8):
        if BF:
            A(f"buffer_load_dwordx4 {vr(96+4*x,4)}, v{vL16}, s[{sWS}:{sWS+3}], s{sOB} offen sc1")
        else:
            for e in range(2):
                A(f"buffer_load_dwordx4 {vr(160+8*x+4*e,4)}, v{vL16}, s[{sWS}:{sWS+3}], s{sOB} offen offset:{e*1024} sc1")
        A(f"s_add_u32 s{sOB}, s{sOB}, {SS}")
    A("v_and_b32 v3, 31, v0\nv_lshlrev_b32 v3, 10, v3\nv_lshrrev_b32 v16, 5, v0\nv_lshl_add_u32 v3, v16, 3, v3")
    A(f"s_lshl_b32 s{sT0}, s{sHQ}, 8\ns_lshl_b32 s{sT1}, s{sXC}, 5\ns_add_u32 s{sT0}, s{sT0}, s{sT1}\ns_add_u32 s{sT0}, s{sT0}, s{sXG}")
    if BF:
        A(f"s_mov_b32 s{sT1}, 0xffff0000")
        for x in range(8):
            A(f"s_waitcnt vmcnt({7 - x})")
            for j in range(4):
                if x == 0:
                    A(f"v_lshlrev_b32 v{160+2*j}, 16, v{96+j}\nv_and_b32 v{161+2*j}, s{sT1}, v{96+j}")
                else:
                    A(f"v_lshlrev_b32 v170, 16, v{96+4*x+j}\nv_and_b32 v171, s{sT1}, v{96+4*x+j}\nv_add_f32 v{160+2*j}, v{160+2*j}, v170\nv_add_f32 v{161+2*j}, v{161+2*j}, v171")
    else:
        for x in range(1, 8):
            A(f"s_waitcnt vmcnt({14 - 2*x})")
            for r in range(8):
                A(f"v_add_f32 v{160+r}, v{160+r}, v{160+8*x+r}")
    for e in range(2):
        A(f"v_cvt_pk_bf16_f32 v{240+2*e}, v{160+4*e}, v{161+4*e}\nv_cvt_pk_bf16_f32 v{241+2*e}, v{162+4*e}, v{163+4*e}")
        A(f"buffer_store_dwordx2 {vr(240+2*e,2)}, v3, s[{sOUT}:{sOUT+3}], s{sT0} offen offset:{e*16}")
    if stamp: A(f"s_add_u32 s{sWAVE}, s{sWAVE}, 1")
    A("s_branch K1_FIN")
    for tag in range(9):
        par = tag % 2 if tag < 8 else 1
        A(f"K1_RARE{tag}:")
        A(f"s_call_b64 s[{sT0}:{sT1}], K1_RAREP{par}")
        A(f"s_branch K1_CK{tag}")
    for par in range(2): rare(par)

    A("K1_LOADER:")
    vDKc = 4; vDK = 8; vDV, vDW = 16, 17; vDO = 12
    A("v_mov_b32 v20, 0\nv_mov_b32 v21, 0\nv_mov_b32 v22, 0\nv_mov_b32 v23, 0")
    A(f"ds_write_b128 v{vFL}, v[20:23]\nds_write_b128 v{vFL}, v[20:23] offset:16\nds_write_b128 v{vFL}, v[20:23] offset:32\nds_write_b128 v{vFL}, v[20:23] offset:48")
    A("v_xor_b32 v3, v2, v1")
    for n in range(4):
        A(f"v_xor_b32 v{vDKc+n}, {4*n}, v3\nv_lshlrev_b32 v{vDKc+n}, 4, v{vDKc+n}\nv_lshl_add_u32 v{vDK+n}, v1, 8, v{vDKc+n}")
    A("v_lshlrev_b32 v3, 2, v1\nv_xor_b32 v3, v3, v2\nv_lshlrev_b32 v3, 4, v3")
    A(f"v_lshl_add_u32 v{vDV}, v1, 8, v3\nv_lshl_add_u32 v{vDW}, v1, 13, v3\nv_lshl_add_u32 v{vDO}, v1, 10, v3")
    A(f"s_lshl_b32 s{sKVOFF}, s{sB}, 5\ns_add_u32 s{sKVOFF}, s{sKVOFF}, s{sH}\ns_lshl_b32 s{sKVOFF}, s{sKVOFF}, 18")
    A(f"s_lshl_b32 s{sWQG}, s{sH}, 8\ns_mov_b32 s{sSEEN}, 0")
    A("s_waitcnt lgkmcnt(0)\ns_barrier")
    srd(A, sWQ, 10, 11, 4 << 20)
    srd(A, sK, 6, 7, 64 << 20)
    srd(A, sV, 8, 9, 64 << 20)
    srd(A, sWS, 18, 19, 256 << 20)
    srd(A, sWO, 12, 13, 4 << 20)
    vt = VmTrack(A)
    vLW = 24; vLD = 26; vLF = 28
    A(f"v_lshlrev_b32 v{vLW}, 4, v0\nv_add_u32 v{vLW+1}, {LV}, v{vLW}")
    def pub(off, val):
        A(f"v_mov_b32 v{vLD}, {val}\nds_write_b32 v{vFL}, v{vLD} offset:{off}")
    def wait_prog(val):
        if val <= 0: return
        Lb = newlab("P")
        A(f"s_cmp_ge_u32 s{sSEEN}, {val}\ns_cbranch_scc1 {Lb}_OK")
        A(f"{Lb}:")
        A(f"ds_read_b96 {vr(vLF,3)}, v{vFL} offset:16\ns_waitcnt lgkmcnt(0)")
        A(f"v_min3_u32 v{vLF}, v{vLF}, v{vLF+1}, v{vLF+2}\ns_nop 0\nv_readfirstlane_b32 s{sSEEN}, v{vLF}")
        A(f"s_cmp_ge_u32 s{sSEEN}, {val}\ns_cbranch_scc0 {Lb}")
        A(f"{Lb}_OK:")
    def piece(name):
        j = int(name[1])
        A(f"s_add_u32 s{sT1}, s{sWQG}, {j*64*8192}")
        for n in range(16):
            A(f"s_mov_b32 m0, {WB[j%6][n//8] + (n%8)*1024}")
            A(f"s_add_u32 s{sT1}, s{sT1}, {4*8192}" if n else "s_nop 0")
            A(f"buffer_load_dwordx4 v{vDW}, s[{sWQ}:{sWQ+3}], s{sT1} offen{' nt' if opt.get('wqnt', 1) else ''} lds")
            vt.issue(name)
    qpub = [0]
    def last_idx(tag): return max(i for i, t in enumerate(vt.ops) if t == tag)
    def pub_q():
        k = qpub[0]
        while k < len(SEQ) and SEQ[k] in vt.ops and last_idx(SEQ[k]) <= vt.done: k += 1
        if k > qpub[0]:
            pub(4, k); qpub[0] = k
    def settle(n):
        if len(vt.ops) - 1 - vt.done > n:
            A(f"s_waitcnt vmcnt({n})"); vt.done = len(vt.ops) - 1 - n
        pub_q()
    def pol(isk, u):
        p = opt.get("kvpol", 0)
        if p == 0: return " nt"
        if p == 1: return ""
        if p == 2: return " nt" if isk else ""
        if p == 3: return "" if isk else " nt"
        if p == 4: return " nt" if u % 2 else ""
        if p == 5: return " sc1"
        if p == 6: return " sc0 sc1"
    def parts(u):
        p = []
        if u <= 31: p.append((sK, LK, True, u))
        if u >= 1: p.append((sV, LV, False, u - 1))
        return p
    def dma_unit(u):
        slot = u % 8
        for (srdb, lbase, isk, tile) in parts(u):
            for g in range(2):
                A(f"s_mov_b32 m0, {lbase + slot*8192 + g*4096}\ns_add_u32 s{sT2}, s{sKVOFF}, {tile*8192 + g*4096}")
                for n in range(4):
                    vo = vDK + n if isk else vDV
                    A(f"buffer_load_dwordx4 v{vo}, s[{srdb}:{srdb+3}], s{sT2} offen offset:{n*1024}{pol(isk, u)} lds")
                    vt.issue(("u", u))
    def rbuf(u, i):
        f = (u - 1) % 7
        if f < 3:
            b = 32 + f * 64 + 4 * i
            return f"v[{b}:{b+3}]"
        b = (f - 3) * 64 + 4 * i
        return f"a[{b}:{b+3}]"
    def reg_unit(u, pace=None):
        for pi, (srdb, lbase, isk, tile) in enumerate(parts(u)):
            for g in range(2):
                if pace is not None: settle(pace)
                A(f"s_add_u32 s{sT2}, s{sKVOFF}, {tile*8192 + g*4096}")
                for n in range(4):
                    vo = vDK + n if isk else vDV
                    A(f"buffer_load_dwordx4 {rbuf(u, pi*8+g*4+n)}, v{vo}, s[{srdb}:{srdb+3}], s{sT2} offen offset:{n*1024}{pol(isk, u)}")
                    vt.issue(("u", u))
    def dump_unit(u):
        slot = u % 8
        for pi in range(2):
            for i in range(8):
                A(f"ds_write_b128 v{vLW+pi}, {rbuf(u, pi*8+i)} offset:{slot*8192 + i*1024}")
        A("s_waitcnt lgkmcnt(0)")
    QN = opt.get("qn", 40)
    def qblock():
        for i, p in enumerate(SEQ):
            if p in PCOND:
                vt.wait(SEQ[need(PCOND[p]) - 1]); pub_q()
                wait_prog(PCOND[p])
            piece(p)
            if i >= 2: settle(QN)
    PB = opt.get("paceb", 44)
    W = opt.get("win", 3)
    JOIN = 15
    A(f"s_cmp_eq_u32 s{sGRP}, 1\ns_cbranch_scc1 K1_LB")
    qblock()
    upub = [0]
    def pub_u(upto):
        if upto > upub[0]:
            vt.wait(("u", upto - 1)); pub_q(); pub(0, upto); upub[0] = upto
    for u in range(JOIN + W):
        if u < 8:
            c = UCOND[u]
            if c > 0:
                vt.wait(SEQ[need(min(c, 7)) - 1]); pub_q()
        else:
            c = QD + u - 7
        wait_prog(c)
        dma_unit(u)
        if u <= 2:
            vt.wait(SEQ[{0: 6, 1: 7, 2: 8}[u] - 1]); pub_q()
        if u >= W: pub_u(u - W + 1)
    assert upub[0] == JOIN
    A("s_branch K1_LJ")
    A("K1_LB:")
    vt.ops = []; vt.done = -1; qpub[0] = 0
    dma_unit(0)
    for u in range(1, 8): reg_unit(u, PB)
    pub(8, 1)
    qblock()
    pub(0, 1)
    for k in range(qpub[0] + 1, len(SEQ) + 1):
        vt.wait(SEQ[k - 1]); pub_q()
    for u in range(1, JOIN):
        wait_prog(UCOND[u] if u < 8 else QD + u - 7)
        vt.wait(("u", u))
        dump_unit(u)
        pub(0, u + 1)
        if u <= 7: reg_unit(u + 7)
        nu = u + W
        if nu >= JOIN:
            wait_prog(QD + nu - 7)
            dma_unit(nu)
    A("K1_LJ:")
    vt.ops = [("u", u) for u in range(JOIN, JOIN + W) for _ in range(16)]; vt.done = -1; qpub[0] = len(SEQ)
    sWOF = 57
    def wo_chunk(c):
        hs = c // 2
        if c % 2 == 0:
            A(f"s_add_u32 s{sWOF}, s{sHQ}, {hs}\ns_and_b32 s{sWOF}, s{sWOF}, 3\ns_lshl_b32 s{sT0}, s{sXC}, 2\ns_add_u32 s{sWOF}, s{sWOF}, s{sT0}")
            A(f"s_lshl_b32 s{sWOF}, s{sWOF}, 17\ns_lshl_b32 s{sT0}, s{sHQ}, 8\ns_add_u32 s{sWOF}, s{sWOF}, s{sT0}")
        base = 128 * KB if c == 0 else (hs * 16 * KB if c % 2 else 56 * KB + hs * 16 * KB)
        if c >= 1: wait_prog(QD + 25 + c if c < opt.get('wlate', 5) else QD + 33)
        for n in range(16):
            A(f"s_mov_b32 m0, {base + n*1024}\ns_nop 0")
            A(f"buffer_load_dwordx4 v{vDO}, s[{sWO}:{sWO+3}], s{sWOF} offen{' nt' if opt.get('wont', 1) else ''} lds")
            A(f"s_add_u32 s{sWOF}, s{sWOF}, 4096")
            vt.issue(("c", c))
    wpub = [0]
    def pub_w():
        k = wpub[0]
        while k < 8 and ("c", k) in vt.ops and last_idx(("c", k)) <= vt.done: k += 1
        if k > wpub[0]:
            pub(36, k); wpub[0] = k
    SCHED = {29: [0], 30: [1], 31: [2], 32: [3, 4, 5, 6, 7]}
    sD2 = 92
    for u in range(JOIN, 33):
        vt.wait(("u", u))
        pub(0, u + 1)
        nu = u + W
        if nu <= 32:
            wait_prog(QD + nu - 7)
            dma_unit(nu)
        if u == 29:
            srd(A, sD2, 16, 17, 256)
            A(f"v_lshlrev_b32 v21, 2, v0\ns_mov_b32 s{sTO}, 0\ns_mov_b32 s{sT3}, 0x01010101")
            A(f"buffer_load_dword v22, v21, s[{sD2}:{sD2+3}], 0 offen sc1"); vt.issue("a")
        if u == 32:
            vt.wait("a")
            A("K1_ALLW:")
            A(f"v_cmp_ne_u32 vcc, s{sT3}, v22\ns_cbranch_vccz K1_ALLOK")
            A(f"s_sleep 8\nbuffer_load_dword v22, v21, s[{sD2}:{sD2+3}], 0 offen sc1\ns_waitcnt vmcnt(0)")
            A(f"s_add_u32 s{sTO}, s{sTO}, 1\ns_cmp_lt_u32 s{sTO}, {TMO}\ns_cbranch_scc1 K1_ALLW")
            A("K1_ALLOK:")
            pub(44, 1)
        for c in SCHED.get(u, []):
            wo_chunk(c)
            if u == 32:
                vt.wait(("c", c - 2)); pub_w()
    stamp_at(A, stamp == 1, 5)
    A(f"buffer_load_ubyte v20, v0, s[{sWS}:{sWS+3}], s{sMB} offen sc1"); vt.issue("m")
    for c in (6, 7):
        vt.wait(("c", c)); pub_w()
    A("s_waitcnt vmcnt(0)")
    A(f"v_cmp_ne_u32 vcc, 0, v20\ns_nop 1\nv_mov_b32 v23, vcc_lo\nds_write_b32 v{vFL}, v23 offset:48")
    A(f"s_mov_b32 s{sTO}, 0\ns_mov_b32 s{sT2}, 0x77777777")
    A("K1_PZ:")
    A(f"buffer_load_ubyte v22, v0, s[{sWS}:{sWS+3}], s{sMB} offen sc1\ns_waitcnt vmcnt(0)")
    A(f"v_cmp_ne_u32 vcc, 0, v22\ns_nop 1\nv_mov_b32 v22, vcc_lo\nv_mov_b32 v23, vcc_hi\ns_and_b32 s{sT0}, vcc_lo, s{sT2}\ns_and_b32 s{sT1}, vcc_hi, 0x7777\nds_write_b64 v{vFL}, v[22:23] offset:48")
    A(f"s_cmp_eq_u32 s{sT0}, s{sT2}\ns_cselect_b32 s{sT0}, s{sT1}, 0\ns_cmp_eq_u32 s{sT0}, 0x7777\ns_cbranch_scc1 K1_FIN")
    A(f"s_add_u32 s{sTO}, s{sTO}, 1\ns_cmp_lt_u32 s{sTO}, {TMO}\ns_cbranch_scc1 K1_PZ")
    A(f"v_mov_b32 v22, -1\nv_mov_b32 v23, -1\nds_write_b64 v{vFL}, v[22:23] offset:48")
    A("K1_FIN:")
    if stamp:
        stamp_store(A, sWS, sT0, f"s_lshl_b32 s{sT0}, s2, 2\ns_add_u32 s{sT0}, s{sT0}, s{sWAVE}", WS_STAMP)
    A("K1_END:\ns_endpgm")

def main(stamp=0, opt=None):
    A = Asm()
    A.raw(f"; @launch grid=(256,1,1) block=(256,1,1) lds={LDS_BYTES}")
    A.raw('.amdgcn_target "amdgcn-amd-amdhsa--gfx950"\n.text')
    A.raw(f".globl {KN}\n.type {KN},@function")
    gen(A, stamp, opt)
    A.raw('.section .rodata,"a"')
    A.raw(kd(KN, 512, 256))
    return A.text()

if __name__ == "__main__":
    stamp = 0
    opt = {}
    for a in sys.argv[1:]:
        if a.startswith("--stamp"): stamp = int(a[7:] or 1)
        elif a.startswith("--") and "=" in a:
            k, v = a[2:].split("="); opt[k] = int(v)
    out = [a for a in sys.argv[1:] if not a.startswith("--")][0]
    open(out, "w").write(main(stamp, opt))
```

```python
import sys, struct
from gen1 import Asm, vr, f32bits, srd, VmTrack, stamp_at, stamp_store, kd, WS_STAMP, SCALE_LOG2E, THRESH

KN = "standalone__gqa_block_cached__near_ridge_kernel"
KB = 1024
LK = 0
LV = 64 * KB
WB = [(128*KB, 136*KB), (144*KB, 64*KB), (8*KB, 16*KB), (72*KB, 80*KB), (24*KB, 32*KB), (88*KB, 96*KB)]
XB = [40 * KB, 104 * KB]
FL = 152 * KB
LDS_BYTES = 160 * KB
WS_O = 0
WS_MB = 7 << 20
WS_P = 32 << 20
QD = 8
NT = " nt"
SEQ = [f"w{i}" for i in range(8)]
PCOND = {"w6": 1, "w7": 2}
def need(hc): return hc + 1
UCOND = {0: 0, 1: 4, 2: 4, 3: 6, 4: 6, 5: 6, 6: 6, 7: 6}
TMO = 0x40000

def gen(A, stamp=0, opt=None):
    opt = opt or {}
    sX, sK, sV, sWQ, sWO, sWS = 20, 24, 28, 32, 36, 40
    sDBG, sOUT = 24, 28
    sWAVE, sB, sH = 44, 45, 46
    sKVOFF = 47
    sT0, sT1, sT2, sT3 = 48, 49, 50, 51
    sC, sTHR = 52, 53
    sXG = 54; sWQG = 55
    sTILE = 58; sSEEN = 59
    sGRP = 62
    sXC, sHQ = 80, 81
    sF, sP, sI, sMB, sTO, sLB, sOB = 82, 83, 84, 85, 86, 87, 88
    lab = [0]
    def newlab(p):
        lab[0] += 1
        return f"K1_{p}{lab[0]}"
    A.raw(f".p2align 8\n{KN}:")
    A("s_cmp_ge_u32 s2, 256\ns_cbranch_scc1 K1_END")
    if stamp:
        for i in range(8): A(f"s_mov_b64 s[{64+2*i}:{65+2*i}], 0")
    stamp_at(A, stamp, 0)
    A("s_load_dwordx16 s[4:19], s[0:1], 0")
    A("v_lshrrev_b32 v1, 6, v0\nv_and_b32 v0, 63, v0\ns_nop 0")
    A(f"v_readfirstlane_b32 s{sWAVE}, v1")
    A(f"s_and_b32 s{sXC}, s2, 7\ns_lshr_b32 s{sT1}, s2, 3\ns_and_b32 s{sHQ}, s{sT1}, 3")
    A(f"s_lshl_b32 s{sH}, s{sXC}, 2\ns_add_u32 s{sH}, s{sH}, s{sHQ}\ns_lshr_b32 s{sB}, s{sT1}, 2")
    if opt.get("gtype", 0) == 0: A(f"s_add_u32 s{sGRP}, s{sB}, s{sH}\ns_and_b32 s{sGRP}, s{sGRP}, 1")
    elif opt.get("gtype") == 1: A(f"s_and_b32 s{sGRP}, s{sB}, 1")
    else: A(f"s_mov_b32 s{sGRP}, 0")
    A(f"s_lshl_b32 s{sMB}, s2, 7\ns_add_u32 s{sMB}, s{sMB}, {WS_MB}")
    A("v_lshrrev_b32 v1, 4, v0\nv_and_b32 v2, 15, v0")
    vFL = 18
    A(f"v_mov_b32 v{vFL}, {FL}")
    A(f"s_cmp_eq_u32 s{sWAVE}, 0\ns_cbranch_scc1 K1_LOADER")

    A(f"s_sub_u32 s{sWAVE}, s{sWAVE}, 1")
    vDX = 64
    A("v_xor_b32 v3, v2, v1")
    for n in range(4):
        A(f"v_xor_b32 v{vDX+n}, {4*n}, v3\nv_lshlrev_b32 v{vDX+n}, 4, v{vDX+n}\nv_lshl_add_u32 v{vDX+n}, v1, 10, v{vDX+n}")
    A(f"s_mul_i32 s{sXG}, s{sB}, 96\ns_lshl_b32 s{sT0}, s{sWAVE}, 5\ns_add_u32 s{sXG}, s{sXG}, s{sT0}\ns_lshl_b32 s{sXG}, s{sXG}, 10")
    A(f"s_lshl_b32 s56, s{sWAVE}, 13")
    A("s_waitcnt lgkmcnt(0)\ns_barrier")
    srd(A, sX, 4, 5, 8*96*512*2)
    srd(A, sWS, 18, 19, 256 << 20)
    srd(A, sDBG, 16, 17, 256)
    srd(A, sOUT, 14, 15, 8*96*512*2)
    A("v_and_b32 v70, 31, v0\nv_lshlrev_b32 v70, 2, v70\nv_mov_b32 v71, 0")
    A(f"s_cmp_eq_u32 s{sWAVE}, 0\ns_cbranch_scc0 K1_NOCLR")
    A(f"buffer_store_dword v71, v70, s[{sWS}:{sWS+3}], s{sMB} offen sc1")
    A("K1_NOCLR:")
    A(f"s_cmp_eq_u32 s{sGRP}, 0\ns_cbranch_scc1 K1_QGO")
    A("K1_QW:")
    A(f"s_sleep 2\nds_read_b32 v58, v{vFL} offset:8\ns_waitcnt lgkmcnt(0)\nv_readfirstlane_b32 s{sT3}, v58")
    A(f"s_cmp_eq_u32 s{sT3}, 0\ns_cbranch_scc1 K1_QW")
    A("K1_QGO:")
    vtc = VmTrack(A)
    def xops(j):
        ops = []
        for n in range(8):
            pre = f"s_add_u32 s57, s{sXG}, {j*256 + n*4096}\ns_add_u32 s60, s56, {XB[j%2] + n*1024}\ns_mov_b32 m0, s60\ns_nop 0\n"
            ops.append(pre + f"buffer_load_dwordx4 v{vDX+n%4}, s[{sX}:{sX+3}], s57 offen{' nt' if opt.get('xnt', 0) else ''} lds")
        return ops
    for j in range(2):
        for op in xops(j):
            A(op); vtc.issue(j)
    vKA = 20; vVA = 28
    vNMC, vL, vTS, vTMP, vTMP2, vAL = 48, 49, 50, 51, 52, 53
    vL16 = 54; vPG = 55; vPA = 56
    vF0 = 58
    vQ = 64; vO = 96
    vXA = [32, 40]
    vWA = [4, 8, 12]
    vS = [160, 176]
    vP = 192; vPK = 208; vKF = 216
    aVF = 0
    A(f"s_mov_b32 s{sC}, {hex(f32bits(SCALE_LOG2E))}\ns_mov_b32 s{sTHR}, {hex(f32bits(THRESH))}")
    A("v_and_b32 v3, 31, v0\nv_lshrrev_b32 v19, 5, v0")
    A("v_and_b32 v60, 15, v3\nv_xor_b32 v60, v60, v19\nv_lshlrev_b32 v60, 4, v60")
    A(f"v_lshl_add_u32 v{vKA}, v3, 8, v60")
    for s in range(1, 8):
        A(f"v_xor_b32 v{vKA+s}, {32*s}, v{vKA}")
    A(f"s_add_u32 s{sT1}, s56, {XB[1]}\ns_add_u32 s{sT0}, s56, {XB[0]}")
    for s in range(8):
        A(f"v_add_u32 v{vXA[0]+s}, s{sT0}, v{vKA+s}\nv_add_u32 v{vXA[1]+s}, s{sT1}, v{vKA+s}")
    A("v_lshrrev_b32 v60, 2, v2")
    A("v_and_b32 v61, 1, v1\nv_lshlrev_b32 v61, 5, v61")
    A("v_and_b32 v62, 3, v2\nv_lshlrev_b32 v62, 3, v62")
    A("v_add_u32 v61, v61, v62")
    for T in range(4):
        A(f"v_xor_b32 v62, {T}, v60\nv_lshl_add_u32 v62, v62, 6, v61")
        A(f"v_lshl_add_u32 v63, v19, 2, v60\nv_lshl_add_u32 v{vVA+T}, v63, 8, v62")
        A(f"v_add_u32 v{vVA+T}, {LV}, v{vVA+T}")
        A(f"v_lshl_add_u32 v63, v19, 3, v60\nv_lshl_add_u32 v{vWA[0]+T}, v63, 8, v62")
        A(f"v_add_u32 v{vWA[1]+T}, {64*KB}, v{vWA[0]+T}\nv_add_u32 v{vWA[2]+T}, {128*KB}, v{vWA[0]+T}")
    A(f"v_lshlrev_b32 v{vL16}, 4, v0")
    A(f"s_lshl_b32 s{sT0}, s{sWAVE}, 2\ns_add_u32 s{sT0}, s{sT0}, {FL+16}\nv_mov_b32 v{vPA}, s{sT0}")
    A(f"s_mov_b32 s{sSEEN}, 0")

    def wait_flag_ops(off, val):
        L = newlab("L")
        return "\n".join([
            f"s_cmp_ge_u32 s{sSEEN}, {val}\ns_cbranch_scc1 {L}_OK",
            f"{L}:",
            f"ds_read_b32 v{vF0}, v{vFL} offset:{off}\ns_waitcnt lgkmcnt(0)\nv_readfirstlane_b32 s{sSEEN}, v{vF0}",
            f"s_cmp_ge_u32 s{sSEEN}, {val}\ns_cbranch_scc0 {L}",
            f"{L}_OK:"])

    AB = [vS[0], vS[1], vP]
    lops = []
    def L(op, tag):
        A(op); lops.append(tag)
    def lwait(tag):
        idx = max(i for i, t in enumerate(lops) if t == tag)
        A(f"s_waitcnt lgkmcnt({min(15, len(lops) - 1 - idx)})")
    def rd(g):
        hc, s4 = g // 4, g % 4
        base = AB[g % 3]
        wb = WB[hc % 6][s4 // 2] + (s4 % 2) * 16 * 256
        reg = vWA[wb // (64*KB)]; off = wb % (64*KB)
        return [f"ds_read_b64_tr_b16 {vr(base+4*T+2*t,2)}, v{reg+T} offset:{off + 4*t*256}" for T in range(4) for t in range(2)]
    aX = 32
    def xrd(j): return [f"ds_read_b128 a[{aX+32*j+4*s}:{aX+32*j+4*s+3}], v{vXA[j%2]+s}" for s in range(8)]
    vtc.wait(0)
    for op in xrd(0): A(op)
    vtc.wait(1)
    for op in xrd(1): A(op)
    A("s_waitcnt lgkmcnt(0)")
    for j in (2, 3):
        for op in xops(j):
            A(op); vtc.issue(j)
    A(wait_flag_ops(4, need(0)))
    xq = []
    for op in rd(0): L(op, 0)
    for op in rd(1): L(op, 1)
    for g in range(32):
        lwait(g)
        if g % 4 == 3:
            A(f"v_mov_b32 v{vPG}, {g//4+1}")
            L(f"ds_write_b32 v{vPA}, v{vPG}", "p")
        if g == 9:
            vtc.wait(3); xq += xrd(2) + xrd(3)
            A(f"s_cmp_eq_u32 s{sWAVE}, 0\ns_cbranch_scc0 K1_NORDY")
            A(f"v_mov_b32 v70, 0\nv_mov_b32 v71, 1\ns_mov_b64 exec, 1\nbuffer_store_byte v71, v70, s[{sDBG}:{sDBG+3}], s2 offen sc1\ns_mov_b64 exec, -1")
            A("K1_NORDY:")
        base = AB[g % 3]
        nx = rd(g + 2) if g + 2 < 32 else []
        for T in range(4):
            c = "0" if g == 0 else vr(vO+16*T,16)
            A(f"v_mfma_f32_32x32x16_bf16 {vr(vO+16*T,16)}, {vr(base+4*T,4)}, a[{aX+4*g}:{aX+4*g+3}], {c}")
            if T == 0 and nx and (g + 2) % 4 == 0:
                A(wait_flag_ops(4, need((g + 2) // 4)))
            for op in nx[2*T:2*T+2]: L(op, g + 2)
            if xq: L(xq.pop(0), "x")
    stamp_at(A, stamp == 1, 1)
    A(f"s_mov_b32 s{sSEEN}, 0\ns_mov_b32 s{sTILE}, 1")
    def wait_landed_ops():
        return wait_flag_ops(0, f"s{sTILE}") + f"\ns_add_u32 s{sTILE}, s{sTILE}, 1"
    def kreads(slot):
        return [f"ds_read_b128 {vr(vKF+4*s,4)}, v{vKA+s} offset:{LK+slot*8192}" for s in range(8)]
    A(wait_landed_ops())
    for op in kreads(0): A(op)
    A("s_nop 7")
    for s in range(8):
        T, hh = s // 2, s % 2
        src = vO + 16 * T + 8 * hh
        d = vQ + 4 * s
        for j in range(4):
            A(f"v_cvt_pk_bf16_f32 v{d+j}, v{src+2*j}, v{src+2*j+1}")
        A("s_nop 1")
        A(f"v_permlane32_swap_b32 v{d}, v{d+2}")
        A(f"v_permlane32_swap_b32 v{d+1}, v{d+3}")

    def consumed():
        A(f"v_add_u32 v{vPG}, 1, v{vPG}\nds_write_b32 v{vPA}, v{vPG}")
    NE1 = 10
    def fma_ops(Sc): return [f"v_fma_f32 v{vP+r}, v{Sc+r}, s{sC}, v{vNMC}" for r in range(16)]
    def exp_ops(): return [f"v_exp_f32 v{vP+r}, v{vP+r}" for r in range(16)]
    def sum_ops():
        ops = [f"v_add_f32 v{vTS}, v{vP}, v{vP+1}", f"v_add_f32 v{vTMP}, v{vP+2}, v{vP+3}"]
        for r in range(4, 16, 2):
            ops += [f"v_add_f32 v{vTS}, v{vTS}, v{vP+r}", f"v_add_f32 v{vTMP}, v{vTMP}, v{vP+r+1}"]
        ops.append(f"v_add_f32 v{vTS}, v{vTS}, v{vTMP}")
        return ops
    def part1(Sc):
        fm, ex = fma_ops(Sc), exp_ops()[:NE1]
        seq = fm[:4]; rest = fm[4:]
        for i in range(max(len(rest), len(ex))):
            if i < len(ex): seq.append(ex[i])
            if i < len(rest): seq.append(rest[i])
        return seq
    def cost(op):
        if op.startswith("v_exp"): return 8
        if op.startswith("ds_"): return 8
        return 4 * (op.count("\n") + 1) if not op.startswith("s_cmp") else 12
    def interleave(mfmas, fillers):
        tot = sum(cost(o) for o in fillers)
        n = len(mfmas)
        if n == 0:
            for op in fillers: A(op)
            return
        acc = 0; k = 0
        for i, m in enumerate(mfmas):
            A(m)
            tgt = tot * (i + 1) / n
            while k < len(fillers) and (acc + cost(fillers[k]) / 2 <= tgt or i == n - 1):
                A(fillers[k]); acc += cost(fillers[k]); k += 1
    def qk(Sn):
        return [f"v_mfma_f32_32x32x16_bf16 {vr(Sn,16)}, {vr(vKF+4*s,4)}, {vr(vQ+4*s,4)}, {'0' if s == 0 else vr(Sn,16)}" for s in range(8)]

    A("s_waitcnt lgkmcnt(0)")
    z = [f"v_mov_b32 v{vO+r}, 0" for r in range(64)] + [f"v_mov_b32 v{vNMC}, 0x7f800000", f"v_mov_b32 v{vL}, 0"]
    interleave(qk(vS[0]), z)
    consumed()
    A(wait_landed_ops())
    for op in kreads(1): A(op)
    A("s_nop 7")
    for op in part1(vS[0]): A(op)

    def iteration(tag, k, last):
        par = k % 2
        Sc, Sn = vS[par], vS[par ^ 1]
        vslot = (k + 1) % 8
        A("s_waitcnt lgkmcnt(0)")
        vrd = [f"ds_read_b64_tr_b16 a[{aVF+16*u+4*T+2*t}:{aVF+16*u+4*T+2*t+1}], v{vVA+T} offset:{vslot*8192+(16*u+8*t)*256}"
               for u in range(2) for T in range(4) for t in range(2)]
        ex = exp_ops()[NE1:]
        f = []
        rest = ex + ["s_nop 0"] + sum_ops()
        ri = 0
        for i in range(16):
            f.append(vrd[i])
            if i % 2 == 1:
                take = 1 if ri < len(ex) else 3
                f += rest[ri:ri+take]; ri += take
        f += rest[ri:]
        f.append(f"v_cmp_nge_f32 vcc, s{sTHR}, v{vTS}\ns_cbranch_vccnz K1_RARE{tag}\nK1_CK{tag}:")
        f.append(f"v_add_f32 v{vL}, v{vL}, v{vTS}")
        f += [f"v_cvt_pk_bf16_f32 v{vPK+j}, v{vP+2*j}, v{vP+2*j+1}" for j in range(8)]
        interleave([] if last else qk(Sn), f)
        A("s_waitcnt lgkmcnt(0)")
        if not last: consumed()
        else: A("s_nop 0")
        pv = [f"v_mfma_f32_32x32x16_bf16 {vr(vO+16*T,16)}, a[{aVF+16*u+4*T}:{aVF+16*u+4*T+3}], {vr(vPK+4*u,4)}, {vr(vO+16*T,16)}"
              for u in range(2) for T in range(4)]
        if last:
            A("s_nop 0")
            for m in pv: A(m)
            return
        p1 = part1(Sn)
        h = 10
        kr = kreads((k + 2) % 8)
        tail = []
        r2 = p1[h:]
        for i in range(8):
            tail.append(kr[i])
            if i % 2 == 1: tail += r2[:2]; r2 = r2[2:]
        tail += r2
        f = ["s_nop 3"] + p1[:h] + [wait_landed_ops()] + tail
        interleave(pv, f)

    def rare(par):
        Sc = vS[par]
        A(f"K1_RAREP{par}:")
        A(f"v_max3_f32 v{vTMP}, v{Sc}, v{Sc+1}, v{Sc+2}")
        for r in range(3, 15, 2):
            A(f"v_max3_f32 v{vTMP}, v{vTMP}, v{Sc+r}, v{Sc+r+1}")
        A(f"v_max_f32 v{vTMP}, v{vTMP}, v{Sc+15}")
        A(f"v_mov_b32 v{vTMP2}, v{vTMP}\ns_nop 1\nv_permlane32_swap_b32 v{vTMP}, v{vTMP2}\nv_max_f32 v{vTMP}, v{vTMP}, v{vTMP2}")
        A(f"v_mul_f32 v{vTMP}, s{sC}, v{vTMP}")
        A(f"v_sub_f32 v{vTMP}, 0, v{vTMP}\nv_min_f32 v{vTMP}, v{vNMC}, v{vTMP}")
        A(f"v_sub_f32 v{vAL}, v{vTMP}, v{vNMC}\nv_exp_f32 v{vAL}, v{vAL}\nv_mov_b32 v{vNMC}, v{vTMP}")
        A(f"v_mul_f32 v{vL}, v{vL}, v{vAL}")
        for r in range(64):
            A(f"v_mul_f32 v{vO+r}, v{vO+r}, v{vAL}")
        for op in fma_ops(Sc) + exp_ops(): A(op)
        A("s_nop 0")
        for op in sum_ops(): A(op)
        A(f"s_setpc_b64 s[{sT0}:{sT1}]")

    A("K1_LOOP:")
    for k in range(8):
        if k == 7:
            A(f"s_cmp_eq_u32 s{sTILE}, 34\ns_cbranch_scc1 K1_LAST")
        iteration(k, k, False)
    if stamp == 1:
        for idx, val in ((2, 11), (3, 19), (4, 27)):
            A(f"s_cmp_eq_u32 s{sTILE}, {val}\ns_cbranch_scc0 K1_NS{idx}")
            stamp_at(A, 1, idx)
            A(f"K1_NS{idx}:")
    A("s_branch K1_LOOP")
    A("K1_LAST:")
    iteration(8, 7, True)
    A(f"v_mov_b32 v{vTMP}, v{vL}\ns_nop 1\nv_permlane32_swap_b32 v{vL}, v{vTMP}\nv_add_f32 v{vL}, v{vL}, v{vTMP}")
    A(f"v_rcp_f32 v{vAL}, v{vL}")
    A(f"s_lshl_b32 s{sOB}, s{sB}, 5\ns_lshl_b32 s{sT0}, s{sXC}, 2\ns_add_u32 s{sOB}, s{sOB}, s{sT0}\ns_mul_i32 s{sOB}, s{sOB}, 24576\ns_add_u32 s{sOB}, s{sOB}, s56")
    A(f"s_mul_i32 s{sT0}, s{sHQ}, 24576\ns_add_u32 s{sT0}, s{sT0}, s{sOB}\ns_add_u32 s{sT1}, s{sT0}, 4096")
    A("s_nop 3")
    A(f"s_lshl_b32 s{sT2}, s{sHQ}, 2\ns_lshl_b32 s{sP}, 1, s{sT2}\ns_xor_b32 s{sP}, s{sP}, 0x1111")
    stamp_at(A, stamp in (1,), 6)
    stamp_at(A, stamp in (9, 10), 1)
    tt = VmTrack(A)
    for T in range(4):
        for ip in range(2):
            src = vO + 16 * T + 8 * ip
            blk = 2 * T + ip
            d = vKF + 4 * blk
            for j in range(8):
                A(f"v_mul_f32 v{src+j}, v{src+j}, v{vAL}")
            for j in range(4):
                A(f"v_cvt_pk_bf16_f32 v{d+j}, v{src+2*j}, v{src+2*j+1}")
            A(f"buffer_store_dwordx4 {vr(d,4)}, v{vL16}, s[{sWS}:{sWS+3}], s{sT0 if blk < 4 else sT1} offen offset:{(blk%4)*1024} sc1")
            tt.issue("ost")
    consumed()
    A(f"s_mov_b32 s{sSEEN}, 0")
    A(wait_flag_ops(44, 1))
    A(f"s_mov_b32 s{sSEEN}, 0")
    vTA = 4
    vZ = 8; vFT = 9; vM1 = 10; vM2 = 11; vONE = 12
    A(f"v_and_b32 v{vM1}, 3, v0\nv_lshlrev_b32 v{vM1}, 2, v{vM1}\nv_and_b32 v{vM2}, 7, v0\nv_lshlrev_b32 v{vM2}, 2, v{vM2}\nv_add_u32 v{vM2}, 32, v{vM2}\nv_mov_b32 v{vONE}, 1")

    def publish(which):
        if which == 1:
            A(f"v_and_b32 v16, 3, v0\nv_lshlrev_b32 v16, 10, v16")
            A(f"s_lshl_b32 s{sT0}, s{sB}, 5\ns_add_u32 s{sT0}, s{sT0}, s{sXC}\ns_lshl_b32 s{sT0}, s{sT0}, 7\ns_lshl_b32 s{sT1}, s{sHQ}, 2\ns_add_u32 s{sT0}, s{sT0}, s{sT1}\ns_add_u32 s{sT0}, s{sT0}, {WS_MB}")
            msk = 15
        else:
            A(f"v_and_b32 v16, 7, v0\nv_lshlrev_b32 v16, 7, v16")
            A(f"s_andn2_b32 s{sT0}, s2, 7\ns_lshl_b32 s{sT0}, s{sT0}, 7\ns_lshl_b32 s{sT1}, s{sXC}, 2\ns_add_u32 s{sT0}, s{sT0}, s{sT1}\ns_add_u32 s{sT0}, s{sT0}, {WS_MB + 16}")
            msk = 255
        A(f"s_add_u32 s{sT0}, s{sT0}, s{sWAVE}")
        A("s_waitcnt vmcnt(0)")
        A(f"s_mov_b64 exec, {msk}\nbuffer_store_byte v{vONE}, v16, s[{sWS}:{sWS+3}], s{sT0} offen sc1\ns_mov_b64 exec, -1")

    def peer_load(areg, tag):
        A(f"s_mul_i32 s{sT0}, s{sI}, 24576\ns_add_u32 s{sT0}, s{sT0}, s{sOB}\ns_add_u32 s{sT1}, s{sT0}, 4096")
        for blk in range(8):
            A(f"buffer_load_dwordx4 a[{areg+4*blk}:{areg+4*blk+3}], v{vL16}, s[{sWS}:{sWS+3}], s{sT0 if blk < 4 else sT1} offen offset:{(blk%4)*1024} sc1")
            tt.issue(tag)

    vTB = 20
    def stage(bfrag, first, w0, w4, pre=None):
        A(f"s_sub_u32 s{sT0}, s{sLB}, {16*KB + LV}\ns_add_u32 s{sT1}, s{sLB}, {(128*KB if first else 56*KB) - LV}")
        for T in range(4):
            A(f"v_add_u32 v{vTA+T}, s{sT0}, v{vVA+T}\nv_add_u32 v{vTB+T}, s{sT1}, v{vVA+T}")
        lo = []
        def LL(op, tag): A(op); lo.append(tag)
        def lw(tag):
            idx = max(i for i, t in enumerate(lo) if t == tag)
            A(f"s_waitcnt lgkmcnt({min(15, len(lo) - 1 - idx)})")
        def r2(s):
            ra = vTB if s < 4 else vTA
            return [f"ds_read_b64_tr_b16 {vr(AB[s%3]+4*T+2*t,2)}, v{ra+T} offset:{(16*s+8*t)*256}" for T in range(4) for t in range(2)]
        A(wait_flag_ops(36, w0))
        for op in r2(0): LL(op, 0)
        for op in r2(1): LL(op, 1)
        if pre: pre()
        for s in range(8):
            lw(s)
            nx = r2(s + 2) if s + 2 < 8 else []
            for T in range(4):
                c = "0" if (first and s == 0) else vr(vO+16*T,16)
                A(f"v_mfma_f32_32x32x16_bf16 {vr(vO+16*T,16)}, {vr(AB[s%3]+4*T,4)}, {bfrag(s)}, {c}")
                if T == 0 and s == 2 and w4 is not None: A(wait_flag_ops(36, w4))
                for op in nx[2*T:2*T+2]: LL(op, s + 2)

    own = lambda s: vr(vKF + 4 * s, 4)
    def set_lb(slot): A(f"s_mov_b32 s{sLB}, {slot*16*KB}")
    sN = 89; sLBK = 90
    def read_mask():
        A(f"ds_read_b32 v{vF0}, v{vFL} offset:48\ns_waitcnt lgkmcnt(0)\nv_readfirstlane_b32 s{sF}, v{vF0}\ns_nop 0\ns_lshr_b32 s{sF}, s{sF}, s{sWAVE}")
    def issue_peer(k):
        A(f"s_ff1_i32_b32 s{sI}, s{sT2}\ns_bitset0_b32 s{sP}, s{sI}\ns_lshr_b32 s{sI}, s{sI}, 2")
        peer_load(32 * k, "p")
        A(f"s_sub_u32 s{sLBK+k}, s{sI}, s{sHQ}\ns_and_b32 s{sLBK+k}, s{sLBK+k}, 3\ns_lshl_b32 s{sLBK+k}, s{sLBK+k}, 14")
        A(f"s_mov_b32 s{sN}, {k+1}")
    def try_peer(k):
        Lb = newlab("T")
        A(f"s_cmp_eq_u32 s{sN}, {k}\ns_cbranch_scc0 {Lb}")
        A(f"s_and_b32 s{sT2}, s{sF}, s{sP}\ns_cbranch_scc0 {Lb}")
        issue_peer(k)
        A(f"{Lb}:")
    def block_peer(k):
        Lb = newlab("B")
        A(f"s_cmp_gt_u32 s{sN}, {k}\ns_cbranch_scc1 {Lb}_OK")
        A(f"{Lb}:")
        read_mask()
        A(f"s_and_b32 s{sT2}, s{sF}, s{sP}\ns_cbranch_scc0 {Lb}")
        issue_peer(k)
        A(f"{Lb}_OK:")
    A(f"s_mov_b32 s{sN}, 0")
    publish(1)
    stamp_at(A, stamp == 10, 2)
    read_mask()
    for k in range(3): try_peer(k)
    set_lb(0); stage(own, True, 1, 2)
    stamp_at(A, stamp == 10, 3)
    for k in range(3):
        block_peer(k)
        if k < 2:
            read_mask()
            for k2 in range(k + 1, 3): try_peer(k2)
        def pre(k=k):
            Lb = newlab("W")
            if k == 2:
                A("s_waitcnt vmcnt(0)"); return
            if k == 0:
                A(f"s_cmp_eq_u32 s{sN}, 3\ns_cbranch_scc0 {Lb}_a\ns_waitcnt vmcnt(16)\ns_branch {Lb}_e\n{Lb}_a:")
            A(f"s_cmp_eq_u32 s{sN}, {k+2}\ns_cbranch_scc0 {Lb}_b\ns_waitcnt vmcnt(8)\ns_branch {Lb}_e\n{Lb}_b:\ns_waitcnt vmcnt(0)\n{Lb}_e:")
        A(f"s_mov_b32 s{sLB}, s{sLBK+k}")
        A(f"s_lshr_b32 s{sT3}, s{sLB}, 13\ns_add_u32 s{sT3}, s{sT3}, 2")
        stage(lambda s_, k=k: f"a[{32*k+4*s_}:{32*k+4*s_+3}]", False, f"s{sT3}", None, pre=pre)
        if k < 2: stamp_at(A, stamp == 10, 5 + k)
    A("K1_TZ:")
    stamp_at(A, stamp == 9, 2)
    stamp_at(A, stamp == 10, 4)
    BF = opt.get("bfp", 1)
    RS = 8 * 3072 if BF else 49152
    SS = 3072 if BF else 6144
    A(f"s_lshl_b32 s{sOB}, s{sB}, 2\ns_add_u32 s{sOB}, s{sOB}, s{sHQ}\ns_mul_i32 s{sOB}, s{sOB}, {8*RS}\ns_add_u32 s{sOB}, s{sOB}, {WS_P}")
    A(f"s_lshl_b32 s{sT1}, s{sWAVE}, {10 if BF else 11}\ns_add_u32 s{sOB}, s{sOB}, s{sT1}")
    A(f"s_mul_i32 s{sT0}, s{sXC}, {SS}\ns_add_u32 s{sT0}, s{sT0}, s{sOB}")
    A("s_nop 7\ns_nop 3")
    if BF:
        for r in range(8):
            src = vO + 8 * r
            d = vKF + 4 * r
            for j in range(4):
                A(f"v_cvt_pk_bf16_f32 v{d+j}, v{src+2*j}, v{src+2*j+1}")
            A(f"buffer_store_dwordx4 {vr(d,4)}, v{vL16}, s[{sWS}:{sWS+3}], s{sT0} offen sc1")
            A(f"s_add_u32 s{sT0}, s{sT0}, {RS}")
    else:
        for T in range(4):
            for i in range(4):
                A(f"buffer_store_dwordx4 {vr(vO+16*T+4*i,4)}, v{vL16}, s[{sWS}:{sWS+3}], s{sT0} offen offset:{(i%2)*1024} sc1")
                if i % 2 == 1: A(f"s_add_u32 s{sT0}, s{sT0}, 49152")
    publish(2)
    stamp_at(A, stamp == 9, 3)
    A(f"s_mul_i32 s{sT0}, s{sXC}, {RS}\ns_add_u32 s{sOB}, s{sOB}, s{sT0}")
    A(f"s_add_u32 s{sT3}, s{sWAVE}, 16")
    A("K1_ZP:")
    A(f"ds_read_b64 v[{vF0}:{vF0+1}], v{vFL} offset:48\ns_waitcnt lgkmcnt(0)\nv_readfirstlane_b32 s{sF}, v{vF0}\nv_readfirstlane_b32 s{sF+1}, v{vF0+1}")
    A(f"s_lshr_b64 s[{sF}:{sF+1}], s[{sF}:{sF+1}], s{sT3}\ns_and_b32 s{sT2}, s{sF}, 0x11111111\ns_cmp_eq_u32 s{sT2}, 0x11111111\ns_cbranch_scc0 K1_ZP")
    A("K1_ZG:")
    stamp_at(A, stamp == 9, 4)
    for x in range(8):
        if BF:
            A(f"buffer_load_dwordx4 {vr(96+4*x,4)}, v{vL16}, s[{sWS}:{sWS+3}], s{sOB} offen sc1")
        else:
            for e in range(2):
                A(f"buffer_load_dwordx4 {vr(160+8*x+4*e,4)}, v{vL16}, s[{sWS}:{sWS+3}], s{sOB} offen offset:{e*1024} sc1")
        A(f"s_add_u32 s{sOB}, s{sOB}, {SS}")
    A("v_and_b32 v3, 31, v0\nv_lshlrev_b32 v3, 10, v3\nv_lshrrev_b32 v16, 5, v0\nv_lshl_add_u32 v3, v16, 3, v3")
    A(f"s_lshl_b32 s{sT0}, s{sHQ}, 8\ns_lshl_b32 s{sT1}, s{sXC}, 5\ns_add_u32 s{sT0}, s{sT0}, s{sT1}\ns_add_u32 s{sT0}, s{sT0}, s{sXG}")
    if BF:
        A(f"s_mov_b32 s{sT1}, 0xffff0000")
        for x in range(8):
            A(f"s_waitcnt vmcnt({7 - x})")
            for j in range(4):
                if x == 0:
                    A(f"v_lshlrev_b32 v{160+2*j}, 16, v{96+j}\nv_and_b32 v{161+2*j}, s{sT1}, v{96+j}")
                else:
                    A(f"v_lshlrev_b32 v170, 16, v{96+4*x+j}\nv_and_b32 v171, s{sT1}, v{96+4*x+j}\nv_add_f32 v{160+2*j}, v{160+2*j}, v170\nv_add_f32 v{161+2*j}, v{161+2*j}, v171")
    else:
        for x in range(1, 8):
            A(f"s_waitcnt vmcnt({14 - 2*x})")
            for r in range(8):
                A(f"v_add_f32 v{160+r}, v{160+r}, v{160+8*x+r}")
    for e in range(2):
        A(f"v_cvt_pk_bf16_f32 v{240+2*e}, v{160+4*e}, v{161+4*e}\nv_cvt_pk_bf16_f32 v{241+2*e}, v{162+4*e}, v{163+4*e}")
        A(f"buffer_store_dwordx2 {vr(240+2*e,2)}, v3, s[{sOUT}:{sOUT+3}], s{sT0} offen offset:{e*16}")
    if stamp: A(f"s_add_u32 s{sWAVE}, s{sWAVE}, 1")
    A("s_branch K1_FIN")
    for tag in range(9):
        par = tag % 2 if tag < 8 else 1
        A(f"K1_RARE{tag}:")
        A(f"s_call_b64 s[{sT0}:{sT1}], K1_RAREP{par}")
        A(f"s_branch K1_CK{tag}")
    for par in range(2): rare(par)

    A("K1_LOADER:")
    vDKc = 4; vDK = 8; vDV, vDW = 16, 17; vDO = 12
    A("v_mov_b32 v20, 0\nv_mov_b32 v21, 0\nv_mov_b32 v22, 0\nv_mov_b32 v23, 0")
    A(f"ds_write_b128 v{vFL}, v[20:23]\nds_write_b128 v{vFL}, v[20:23] offset:16\nds_write_b128 v{vFL}, v[20:23] offset:32\nds_write_b128 v{vFL}, v[20:23] offset:48")
    A("v_xor_b32 v3, v2, v1")
    for n in range(4):
        A(f"v_xor_b32 v{vDKc+n}, {4*n}, v3\nv_lshlrev_b32 v{vDKc+n}, 4, v{vDKc+n}\nv_lshl_add_u32 v{vDK+n}, v1, 8, v{vDKc+n}")
    A("v_lshlrev_b32 v3, 2, v1\nv_xor_b32 v3, v3, v2\nv_lshlrev_b32 v3, 4, v3")
    A(f"v_lshl_add_u32 v{vDV}, v1, 8, v3\nv_lshl_add_u32 v{vDW}, v1, 13, v3\nv_lshl_add_u32 v{vDO}, v1, 10, v3")
    A(f"s_lshl_b32 s{sKVOFF}, s{sB}, 5\ns_add_u32 s{sKVOFF}, s{sKVOFF}, s{sH}\ns_lshl_b32 s{sKVOFF}, s{sKVOFF}, 18")
    A(f"s_lshl_b32 s{sWQG}, s{sH}, 8\ns_mov_b32 s{sSEEN}, 0")
    A("s_waitcnt lgkmcnt(0)\ns_barrier")
    srd(A, sWQ, 10, 11, 4 << 20)
    srd(A, sK, 6, 7, 64 << 20)
    srd(A, sV, 8, 9, 64 << 20)
    srd(A, sWS, 18, 19, 256 << 20)
    srd(A, sWO, 12, 13, 4 << 20)
    vt = VmTrack(A)
    vLW = 24; vLD = 26; vLF = 28
    A(f"v_lshlrev_b32 v{vLW}, 4, v0\nv_add_u32 v{vLW+1}, {LV}, v{vLW}")
    def pub(off, val):
        A(f"v_mov_b32 v{vLD}, {val}\nds_write_b32 v{vFL}, v{vLD} offset:{off}")
    def wait_prog(val):
        if val <= 0: return
        Lb = newlab("P")
        A(f"s_cmp_ge_u32 s{sSEEN}, {val}\ns_cbranch_scc1 {Lb}_OK")
        A(f"{Lb}:")
        A(f"ds_read_b96 {vr(vLF,3)}, v{vFL} offset:16\ns_waitcnt lgkmcnt(0)")
        A(f"v_min3_u32 v{vLF}, v{vLF}, v{vLF+1}, v{vLF+2}\ns_nop 0\nv_readfirstlane_b32 s{sSEEN}, v{vLF}")
        A(f"s_cmp_ge_u32 s{sSEEN}, {val}\ns_cbranch_scc0 {Lb}")
        A(f"{Lb}_OK:")
    def piece(name):
        j = int(name[1])
        A(f"s_add_u32 s{sT1}, s{sWQG}, {j*64*8192}")
        for n in range(16):
            A(f"s_mov_b32 m0, {WB[j%6][n//8] + (n%8)*1024}")
            A(f"s_add_u32 s{sT1}, s{sT1}, {4*8192}" if n else "s_nop 0")
            A(f"buffer_load_dwordx4 v{vDW}, s[{sWQ}:{sWQ+3}], s{sT1} offen{' nt' if opt.get('wqnt', 0) else ''} lds")
            vt.issue(name)
    qpub = [0]
    def last_idx(tag): return max(i for i, t in enumerate(vt.ops) if t == tag)
    def pub_q():
        k = qpub[0]
        while k < len(SEQ) and SEQ[k] in vt.ops and last_idx(SEQ[k]) <= vt.done: k += 1
        if k > qpub[0]:
            pub(4, k); qpub[0] = k
    def settle(n):
        if len(vt.ops) - 1 - vt.done > n:
            A(f"s_waitcnt vmcnt({n})"); vt.done = len(vt.ops) - 1 - n
        pub_q()
    def pol(isk, u):
        p = opt.get("kvpol", 0)
        if p == 0: return " nt"
        if p == 1: return ""
        if p == 2: return " nt" if isk else ""
        if p == 3: return "" if isk else " nt"
        if p == 4: return " nt" if u % 2 else ""
        if p == 5: return " sc1"
        if p == 6: return " sc0 sc1"
    def parts(u):
        p = []
        if u <= 31: p.append((sK, LK, True, u))
        if u >= 1: p.append((sV, LV, False, u - 1))
        return p
    def dma_unit(u):
        slot = u % 8
        for (srdb, lbase, isk, tile) in parts(u):
            for g in range(2):
                A(f"s_mov_b32 m0, {lbase + slot*8192 + g*4096}\ns_add_u32 s{sT2}, s{sKVOFF}, {tile*8192 + g*4096}")
                for n in range(4):
                    vo = vDK + n if isk else vDV
                    A(f"buffer_load_dwordx4 v{vo}, s[{srdb}:{srdb+3}], s{sT2} offen offset:{n*1024}{pol(isk, u)} lds")
                    vt.issue(("u", u))
    def rbuf(u, i):
        f = (u - 1) % 7
        if f < 3:
            b = 32 + f * 64 + 4 * i
            return f"v[{b}:{b+3}]"
        b = (f - 3) * 64 + 4 * i
        return f"a[{b}:{b+3}]"
    def reg_unit(u, pace=None):
        for pi, (srdb, lbase, isk, tile) in enumerate(parts(u)):
            for g in range(2):
                if pace is not None: settle(pace)
                A(f"s_add_u32 s{sT2}, s{sKVOFF}, {tile*8192 + g*4096}")
                for n in range(4):
                    vo = vDK + n if isk else vDV
                    A(f"buffer_load_dwordx4 {rbuf(u, pi*8+g*4+n)}, v{vo}, s[{srdb}:{srdb+3}], s{sT2} offen offset:{n*1024}{pol(isk, u)}")
                    vt.issue(("u", u))
    def dump_unit(u):
        slot = u % 8
        for pi in range(2):
            for i in range(8):
                A(f"ds_write_b128 v{vLW+pi}, {rbuf(u, pi*8+i)} offset:{slot*8192 + i*1024}")
        A("s_waitcnt lgkmcnt(0)")
    QN = opt.get("qn", 40)
    def qblock():
        for i, p in enumerate(SEQ):
            if p in PCOND:
                vt.wait(SEQ[need(PCOND[p]) - 1]); pub_q()
                wait_prog(PCOND[p])
            piece(p)
            if i >= 2: settle(QN)
    PB = opt.get("paceb", 44)
    W = opt.get("win", 3)
    JOIN = 15
    A(f"s_cmp_eq_u32 s{sGRP}, 1\ns_cbranch_scc1 K1_LB")
    qblock()
    upub = [0]
    def pub_u(upto):
        if upto > upub[0]:
            vt.wait(("u", upto - 1)); pub_q(); pub(0, upto); upub[0] = upto
    for u in range(JOIN + W):
        if u < 8:
            c = UCOND[u]
            if c > 0:
                vt.wait(SEQ[need(min(c, 7)) - 1]); pub_q()
        else:
            c = QD + u - 7
        wait_prog(c)
        dma_unit(u)
        if u <= 2:
            vt.wait(SEQ[{0: 6, 1: 7, 2: 8}[u] - 1]); pub_q()
        if u >= W: pub_u(u - W + 1)
    assert upub[0] == JOIN
    A("s_branch K1_LJ")
    A("K1_LB:")
    vt.ops = []; vt.done = -1; qpub[0] = 0
    dma_unit(0)
    for u in range(1, 8): reg_unit(u, PB)
    pub(8, 1)
    qblock()
    pub(0, 1)
    for k in range(qpub[0] + 1, len(SEQ) + 1):
        vt.wait(SEQ[k - 1]); pub_q()
    for u in range(1, JOIN):
        wait_prog(UCOND[u] if u < 8 else QD + u - 7)
        vt.wait(("u", u))
        dump_unit(u)
        pub(0, u + 1)
        if u <= 7: reg_unit(u + 7)
        nu = u + W
        if nu >= JOIN:
            wait_prog(QD + nu - 7)
            dma_unit(nu)
    A("K1_LJ:")
    vt.ops = [("u", u) for u in range(JOIN, JOIN + W) for _ in range(16)]; vt.done = -1; qpub[0] = len(SEQ)
    sWOF = 57
    def wo_chunk(c):
        hs = c // 2
        if c % 2 == 0:
            A(f"s_add_u32 s{sWOF}, s{sHQ}, {hs}\ns_and_b32 s{sWOF}, s{sWOF}, 3\ns_lshl_b32 s{sT0}, s{sXC}, 2\ns_add_u32 s{sWOF}, s{sWOF}, s{sT0}")
            A(f"s_lshl_b32 s{sWOF}, s{sWOF}, 17\ns_lshl_b32 s{sT0}, s{sHQ}, 8\ns_add_u32 s{sWOF}, s{sWOF}, s{sT0}")
        base = 128 * KB if c == 0 else (hs * 16 * KB if c % 2 else 56 * KB + hs * 16 * KB)
        if c >= 1: wait_prog(QD + 25 + c if c < opt.get('wlate', 5) else QD + 33)
        for n in range(16):
            A(f"s_mov_b32 m0, {base + n*1024}\ns_nop 0")
            A(f"buffer_load_dwordx4 v{vDO}, s[{sWO}:{sWO+3}], s{sWOF} offen{' nt' if opt.get('wont', 0) else ''} lds")
            A(f"s_add_u32 s{sWOF}, s{sWOF}, 4096")
            vt.issue(("c", c))
    wpub = [0]
    def pub_w():
        k = wpub[0]
        while k < 8 and ("c", k) in vt.ops and last_idx(("c", k)) <= vt.done: k += 1
        if k > wpub[0]:
            pub(36, k); wpub[0] = k
    SCHED = {29: [0], 30: [1], 31: [2], 32: [3, 4, 5, 6, 7]}
    sD2 = 92
    for u in range(JOIN, 33):
        vt.wait(("u", u))
        pub(0, u + 1)
        nu = u + W
        if nu <= 32:
            wait_prog(QD + nu - 7)
            dma_unit(nu)
        if u == opt.get("wtouch", 0):
            A(f"s_lshl_b32 s{sT0}, s{sXC}, 19\ns_lshr_b32 s{sT1}, s2, 3\ns_lshl_b32 s{sT1}, s{sT1}, 14\ns_add_u32 s{sT0}, s{sT0}, s{sT1}\ns_add_u32 s{sT1}, s{sT0}, 8192")
            A("v_lshlrev_b32 v20, 7, v0")
            A(f"buffer_load_dword v21, v20, s[{sWO}:{sWO+3}], s{sT0} offen\nbuffer_load_dword v22, v20, s[{sWO}:{sWO+3}], s{sT1} offen")
            vt.issue("t"); vt.issue("t")
        if u == 29:
            srd(A, sD2, 16, 17, 256)
            A(f"v_lshlrev_b32 v21, 2, v0\ns_mov_b32 s{sTO}, 0\ns_mov_b32 s{sT3}, 0x01010101")
            A(f"buffer_load_dword v22, v21, s[{sD2}:{sD2+3}], 0 offen sc1"); vt.issue("a")
        if u == 32:
            vt.wait("a")
            A("K1_ALLW:")
            A(f"v_cmp_ne_u32 vcc, s{sT3}, v22\ns_cbranch_vccz K1_ALLOK")
            A(f"s_sleep 8\nbuffer_load_dword v22, v21, s[{sD2}:{sD2+3}], 0 offen sc1\ns_waitcnt vmcnt(0)")
            A(f"s_add_u32 s{sTO}, s{sTO}, 1\ns_cmp_lt_u32 s{sTO}, {TMO}\ns_cbranch_scc1 K1_ALLW")
            A("K1_ALLOK:")
            pub(44, 1)
        for c in SCHED.get(u, []):
            wo_chunk(c)
            if u == 32:
                vt.wait(("c", c - 2)); pub_w()
    stamp_at(A, stamp == 1, 5)
    A(f"buffer_load_ubyte v20, v0, s[{sWS}:{sWS+3}], s{sMB} offen sc1"); vt.issue("m")
    for c in (6, 7):
        vt.wait(("c", c)); pub_w()
    A("s_waitcnt vmcnt(0)")
    A(f"v_cmp_ne_u32 vcc, 0, v20\ns_nop 1\nv_mov_b32 v23, vcc_lo\nds_write_b32 v{vFL}, v23 offset:48")
    A(f"s_mov_b32 s{sTO}, 0\ns_mov_b32 s{sT2}, 0x77777777")
    A("K1_PZ:")
    A(f"buffer_load_ubyte v22, v0, s[{sWS}:{sWS+3}], s{sMB} offen sc1\ns_waitcnt vmcnt(0)")
    A(f"v_cmp_ne_u32 vcc, 0, v22\ns_nop 1\nv_mov_b32 v22, vcc_lo\nv_mov_b32 v23, vcc_hi\ns_and_b32 s{sT0}, vcc_lo, s{sT2}\ns_and_b32 s{sT1}, vcc_hi, 0x7777\nds_write_b64 v{vFL}, v[22:23] offset:48")
    A(f"s_cmp_eq_u32 s{sT0}, s{sT2}\ns_cselect_b32 s{sT0}, s{sT1}, 0\ns_cmp_eq_u32 s{sT0}, 0x7777\ns_cbranch_scc1 K1_FIN")
    A(f"s_add_u32 s{sTO}, s{sTO}, 1\ns_cmp_lt_u32 s{sTO}, {TMO}\ns_cbranch_scc1 K1_PZ")
    A(f"v_mov_b32 v22, -1\nv_mov_b32 v23, -1\nds_write_b64 v{vFL}, v[22:23] offset:48")
    A("K1_FIN:")
    if stamp:
        stamp_store(A, sWS, sT0, f"s_lshl_b32 s{sT0}, s2, 2\ns_add_u32 s{sT0}, s{sT0}, s{sWAVE}", WS_STAMP)
    A("K1_END:\ns_endpgm")

def main(stamp=0, opt=None):
    A = Asm()
    A.raw(f"; @launch grid=(256,1,1) block=(256,1,1) lds={LDS_BYTES}")
    A.raw('.amdgcn_target "amdgcn-amd-amdhsa--gfx950"\n.text')
    A.raw(f".globl {KN}\n.type {KN},@function")
    gen(A, stamp, opt)
    A.raw('.section .rodata,"a"')
    A.raw(kd(KN, 512, 256))
    return A.text()

if __name__ == "__main__":
    stamp = 0
    opt = {}
    for a in sys.argv[1:]:
        if a.startswith("--stamp"): stamp = int(a[7:] or 1)
        elif a.startswith("--") and "=" in a:
            k, v = a[2:].split("="); opt[k] = int(v)
    out = [a for a in sys.argv[1:] if not a.startswith("--")][0]
    open(out, "w").write(main(stamp, opt))
```
